```python
import torch

def _softmax(x, axis=-1):
    return torch.softmax(x, dim=axis)

def _gelu(x):
    return torch.nn.functional.gelu(x, approximate='tanh')

def _silu(x):
    return torch.nn.functional.silu(x)

def _sigmoid(x):
    return torch.sigmoid(x)

def _layernorm(x, axis=-1, eps=1e-05):
    m = x.mean(dim=axis, keepdim=True)
    v = x.var(dim=axis, keepdim=True, unbiased=False)
    return (x - m) / torch.sqrt(v + eps)

def _scatter_add(tgt, idx, src, axis=0):
    return tgt.clone().index_add_(axis, idx, src)

def _segment_sum(src, seg, n):
    out = torch.zeros((n,) + src.shape[1:], dtype=src.dtype)
    return out.index_add_(0, seg, src)

def _pad(x, pw):
    flat = tuple((v for pair in reversed(pw) for v in pair))
    return torch.nn.functional.pad(x, flat)
kernel_name = 'adaLN_cond__gqa_block_cached__dense_activation_relu__decode'

def setup_inputs():

    _w = lambda a: (lambda t: t.to(torch.bfloat16) if t.is_floating_point() else t)(torch.as_tensor(a))

    def _A_setup():
        B, Sq, D = (8, 1, 512)
        Hq, Hkv, Sk, Dh = (32, 8, 4096, 128)
        assert Hq % Hkv == 0, (Hq, Hkv)
        return {'x': _w((lambda *s: torch.randn(*s, dtype=torch.bfloat16) * 0.1)(B, Sq, D)), 'k_cache': _w((lambda *s: torch.randn(*s, dtype=torch.bfloat16) * 0.8)(B, Hkv, Sk, Dh)), 'v_cache': _w((lambda *s: torch.randn(*s, dtype=torch.bfloat16) * 0.8)(B, Hkv, Sk, Dh)), 'wq': _w((lambda *s: torch.randn(*s, dtype=torch.bfloat16) * 0.8)(D, Hq * Dh) * D ** (-0.5)), 'wo': _w((lambda *s: torch.randn(*s, dtype=torch.bfloat16) * 0.8)(Hq * Dh, D) * (Hq * Dh) ** (-0.5))}
    _A_in = _A_setup()

    def _B_setup():
        B, S, D, Dff = (8, 1, 512, 1792)
        return {'x': _w((lambda *s: torch.randn(*s, dtype=torch.bfloat16) * 0.1)(B, S, D)), 'w1': _w((lambda *s: torch.randn(*s, dtype=torch.bfloat16) * 0.1)(D, Dff)), 'w2': _w((lambda *s: torch.randn(*s, dtype=torch.bfloat16) * 0.1)(Dff, D))}
    _B_in = _B_setup()
    return {'A_x': _A_in['x'], 'A_k_cache': _A_in['k_cache'], 'A_v_cache': _A_in['v_cache'], 'A_wq': _A_in['wq'], 'A_wo': _A_in['wo'], 'B_x': _B_in['x'], 'B_w1': _B_in['w1'], 'B_w2': _B_in['w2'], 'c': _w((lambda *s: torch.randn(*s, dtype=torch.bfloat16) * 0.8)(8, 512) * 8.0), 'w_mod': _w((lambda *s: torch.randn(*s, dtype=torch.bfloat16) * 0.8)(512, 6 * 512) * 512 ** (-0.5) * 8.0)}

def reference(A_x, A_k_cache, A_v_cache, A_wq, A_wo, B_x, B_w1, B_w2, c, w_mod):

    def _A_ref(x, k_cache, v_cache, wq, wo):
        B, Sq, D = x.shape
        Hq, Dh = (32, 128)
        Hkv = k_cache.shape[1]
        rep = Hq // Hkv
        q = (lambda x, *d: x.permute(*d))((x @ wq).reshape(B, Sq, Hq, Dh), 0, 2, 1, 3)
        k = (lambda x, n, axis: torch.repeat_interleave(x, n, dim=axis))(k_cache, rep, axis=1)
        v = (lambda x, n, axis: torch.repeat_interleave(x, n, dim=axis))(v_cache, rep, axis=1)
        scores = torch.einsum('bhqd,bhkd->bhqk', q, k) * Dh ** (-0.5)
        p = _softmax(scores, axis=-1)
        o = torch.einsum('bhqk,bhkd->bhqd', p, v)
        return (lambda x, *d: x.permute(*d))(o, 0, 2, 1, 3).reshape(B, Sq, Hq * Dh) @ wo

    def _B_ref(x, w1, w2):
        h = torch.einsum('bsd,df->bsf', x, w1)
        zero = torch.zeros_like(h)
        h = torch.maximum(h, zero)
        return torch.einsum('bsf,fd->bsd', h, w2)
    x = A_x
    mod = (_silu(c) @ w_mod).reshape(c.shape[0], 6, 1, -1)
    sa, ca, ga, sb, cb, gb = (mod[:, 0].clone(), mod[:, 1].clone(), mod[:, 2].clone(), mod[:, 3].clone(), mod[:, 4].clone(), mod[:, 5].clone())
    h = _layernorm(x, axis=-1) * (1 + ca) + sa
    x = x + ga * _A_ref(h, A_k_cache, A_v_cache, A_wq, A_wo)
    h = _layernorm(x, axis=-1) * (1 + cb) + sb
    x = x + gb * _B_ref(h, B_w1, B_w2)
    return x
```

```python
import re
import copy

REG_RE = re.compile(r'^(-?)(abs\()?([vsa])(\d+)\)?$')
RNG_RE = re.compile(r'^(-?)([vsa])\[(\d+):(\d+)\]$')

TRANS = ('v_exp_f32', 'v_log_f32', 'v_rcp_f32', 'v_rsq_f32', 'v_sqrt_f32', 'v_sin_f32', 'v_cos_f32',
         'v_rcp_iflag_f32')


def regs_of(tok):
    tok = tok.strip()
    m = REG_RE.match(tok)
    if m:
        return [(m.group(3), int(m.group(4)))]
    m = RNG_RE.match(tok)
    if m:
        return [(m.group(2), i) for i in range(int(m.group(3)), int(m.group(4)) + 1)]
    if tok == 'vcc':
        return [('s', 'vcc_lo'), ('s', 'vcc_hi')]
    if tok in ('vcc_lo', 'vcc_hi'):
        return [('s', tok)]
    if tok == 'exec':
        return [('s', 'exec_lo'), ('s', 'exec_hi')]
    if tok in ('exec_lo', 'exec_hi'):
        return [('s', tok)]
    if tok == 'm0':
        return [('s', 'm0')]
    return []


def split_ops(s):
    out, depth, cur = [], 0, ''
    for ch in s:
        if ch == '[':
            depth += 1
        if ch == ']':
            depth -= 1
        if ch == ',' and depth == 0:
            out.append(cur.strip())
            cur = ''
        else:
            cur += ch
    if cur.strip():
        out.append(cur.strip())
    return out


class Ins:
    __slots__ = ('text', 'op', 'kind', 'wr', 'rd', 'dpp', 'passes', 'mA', 'mB', 'mC', 'store_data', 'ws',
                 'lanesel', 'lds_dma')

    def __init__(self, text):
        self.text = text
        t = text.split(';')[0].strip()
        parts = t.split(None, 1)
        op = parts[0]
        rest = parts[1] if len(parts) > 1 else ''
        self.op = op
        self.wr, self.rd = [], []
        self.dpp = False
        self.passes = 0
        self.mA = self.mB = self.mC = []
        self.store_data = []
        self.lanesel = []
        self.lds_dma = False
        self.ws = 1
        ops = split_ops(rest)
        mods = ''
        if ops:
            last = ops[-1].split(None, 1)
            if len(last) > 1:
                ops[-1] = last[0]
                mods = last[1]
        base = re.sub(r'_(e32|e64|dpp|sdwa)$', '', op)
        if op == 's_nop':
            self.kind = 'nop'
            self.ws = int(ops[0], 0) + 1
        elif op.startswith('v_mfma'):
            self.kind = 'mfma'
            self.wr = regs_of(ops[0])
            self.mA, self.mB, self.mC = regs_of(ops[1]), regs_of(ops[2]), regs_of(ops[3])
            self.rd = self.mA + self.mB + self.mC
            if '32x32x16' in op or '32x32x8' in op:
                self.passes = 8
            elif '16x16x32' in op or '16x16x16' in op:
                self.passes = 4
            elif '4x4x4' in op:
                self.passes = 2
            else:
                raise ValueError('unknown mfma ' + op)
        elif op.startswith('v_'):
            self.kind = 'valu'
            if 'quad_perm' in mods or 'row_' in mods or 'wave_' in mods or op.endswith('_dpp'):
                self.dpp = True
            nd = 1
            if base in ('v_add_co_u32', 'v_sub_co_u32', 'v_addc_co_u32', 'v_subb_co_u32', 'v_div_scale_f32',
                        'v_mad_u64_u32'):
                nd = 2
            if base.startswith('v_permlane') and base.endswith('swap_b32'):
                self.wr = regs_of(ops[0]) + regs_of(ops[1])
                self.rd = list(self.wr)
            elif base == 'v_nop':
                pass
            else:
                for o in ops[:nd]:
                    self.wr += regs_of(o)
                for o in ops[nd:]:
                    self.rd += regs_of(o)
                if base in ('v_fmac_f32', 'v_dot2c_f32_bf16', 'v_dot2c_f32_f16', 'v_writelane_b32', 'v_pk_fmac_f16'):
                    self.rd += regs_of(ops[0])
                if self.dpp:
                    self.rd += regs_of(ops[0])
                if base in ('v_readlane_b32', 'v_writelane_b32'):
                    self.lanesel = regs_of(ops[2])
                if base == 'v_div_fmas_f32':
                    self.rd += regs_of('vcc')
                if base.startswith('v_cmpx'):
                    self.wr += regs_of('exec')
        elif op.startswith('buffer_') or op.startswith('global_'):
            self.kind = 'vmem'
            if op.startswith('buffer_wbl2') or op.startswith('buffer_inv'):
                pass
            elif op.startswith('buffer_'):
                if ' lds' in (' ' + mods):
                    self.lds_dma = True
                    for o in ops:
                        self.rd += regs_of(o)
                    self.rd += regs_of('m0')
                elif 'load' in op:
                    self.wr = regs_of(ops[0])
                    for o in ops[1:]:
                        self.rd += regs_of(o)
                    if 'd16' in op:
                        self.rd += self.wr
                elif 'store' in op:
                    self.store_data = regs_of(ops[0])
                    for o in ops:
                        self.rd += regs_of(o)
                elif 'atomic' in op:
                    for o in ops:
                        self.rd += regs_of(o)
                    if 'sc0' in mods:
                        self.wr = regs_of(ops[0])
                else:
                    raise ValueError(op)
            else:
                if 'load_lds' in op:
                    self.lds_dma = True
                    for o in ops:
                        self.rd += regs_of(o)
                    self.rd += regs_of('m0')
                elif 'load' in op:
                    self.wr = regs_of(ops[0])
                    for o in ops[1:]:
                        self.rd += regs_of(o)
                elif 'store' in op:
                    self.store_data = regs_of(ops[1])
                    for o in ops:
                        self.rd += regs_of(o)
                elif 'atomic' in op:
                    if 'sc0' in mods:
                        self.wr = regs_of(ops[0])
                        for o in ops[1:]:
                            self.rd += regs_of(o)
                    else:
                        for o in ops:
                            self.rd += regs_of(o)
                else:
                    raise ValueError(op)
        elif op.startswith('ds_'):
            self.kind = 'ds'
            if op.startswith('ds_read') or op.startswith('ds_bpermute') or op.startswith('ds_permute') \
                    or op.startswith('ds_swizzle') or '_rtn_' in op:
                self.wr = regs_of(ops[0])
                for o in ops[1:]:
                    self.rd += regs_of(o)
            else:
                for o in ops:
                    self.rd += regs_of(o)
        elif op.startswith('s_load') or op.startswith('s_buffer_load') or op in ('s_memtime', 's_memrealtime'):
            self.kind = 'smem'
            self.wr = regs_of(ops[0])
            for o in ops[1:]:
                self.rd += regs_of(o)
        elif op.startswith('s_'):
            self.kind = 'salu'
            nowr = ('s_cmp', 's_cbranch', 's_branch', 's_waitcnt', 's_barrier', 's_endpgm', 's_sleep', 's_setprio',
                    's_bitcmp', 's_setreg', 's_sendmsg', 's_setpc')
            if any(op.startswith(x) for x in nowr):
                for o in ops:
                    self.rd += regs_of(o)
            else:
                self.wr = regs_of(ops[0])
                for o in ops[1:]:
                    self.rd += regs_of(o)
                if 'saveexec' in op:
                    self.wr += regs_of('exec')
                    self.rd += regs_of('exec')
                if op in ('s_addk_i32', 's_mulk_i32', 's_cmov_b32', 's_cmov_b64'):
                    self.rd += self.wr
        else:
            raise ValueError('cannot parse: ' + text)


def overlap(a, b):
    return bool(set(a) & set(b))


class State:
    def __init__(self):
        self.hist = []
        self.vm = []
        self.lgkm = []


class Asm:
    def __init__(self):
        self.lines = []
        self.st = State()
        self.nops_inserted = 0
        self.uid = 0
        self.max_v = -1
        self.max_s = -1
        self.check = True

    def snapshot(self):
        return copy.deepcopy(self.st)

    def restore(self, st):
        self.st = copy.deepcopy(st)

    def raw(self, text):
        self.lines.append(text)

    def comment(self, text):
        self.lines.append('    ; ' + text)

    def newlabel(self, stem):
        self.uid += 1
        return f'L_{stem}_{self.uid}'

    def label(self, name, pad=True):
        self.lines.append(name + ':')

    def _need(self, ins):
        need = 0
        dist = 0
        for p in reversed(self.st.hist):
            req = 0
            vw = [r for r in p.wr if r[0] in 'va']
            sw = [r for r in p.wr if r[0] == 's']
            if p.kind == 'valu':
                if ins.kind == 'mfma' and overlap(vw, ins.rd):
                    req = max(req, 2)
                if ins.kind == 'valu':
                    if ins.dpp and overlap(vw, ins.rd):
                        req = max(req, 2)
                    if ins.op.startswith('v_permlane') and overlap(vw, ins.rd):
                        req = max(req, 2)
                    if (ins.op.startswith('v_readlane') or ins.op.startswith('v_readfirstlane')) and overlap(vw, ins.rd):
                        req = max(req, 1)
                    pb = re.sub(r'_(e32|e64|dpp|sdwa)$', '', p.op)
                    if pb in TRANS and overlap(vw, ins.rd):
                        req = max(req, 1)
                    if ('sdwa' in p.op or 'op_sel' in p.text) and overlap(vw, ins.rd + ins.wr):
                        req = max(req, 1)
                    if pb.startswith('v_dot2') and overlap(vw, ins.rd + ins.wr):
                        ib = re.sub(r'_(e32|e64|dpp|sdwa)$', '', ins.op)
                        if not (ib == pb and overlap(vw, ins.wr)):
                            req = max(req, 3)
                    if overlap(sw, ins.rd):
                        req = max(req, 2)
                    if overlap(sw, ins.lanesel):
                        req = max(req, 4)
                    if ins.op.startswith('v_div_fmas') and overlap(sw, regs_of('vcc')):
                        req = max(req, 4)
                    if overlap(sw, regs_of('exec')):
                        req = max(req, 5 if ins.dpp else 4)
                if ins.kind == 'vmem' and overlap(sw, ins.rd):
                    req = max(req, 5)
                if ins.kind == 'mfma' and overlap(sw, regs_of('exec')):
                    req = max(req, 4)
            if p.kind == 'mfma':
                k = {2: 0, 4: 1, 8: 2, 16: 3}[p.passes]
                if ins.kind == 'mfma':
                    if overlap(p.wr, ins.mA + ins.mB):
                        req = max(req, (5, 8, 12, 20)[k])
                    if overlap(p.wr, ins.mC):
                        if p.wr == ins.mC and p.passes == ins.passes:
                            req = max(req, (2, 0, 0, 0)[k])
                        else:
                            req = max(req, (4, 6, 10, 18)[k])
                    elif overlap(p.wr, ins.wr):
                        req = max(req, (4, 6, 10, 18)[k])
                elif ins.kind in ('valu', 'vmem', 'ds'):
                    if overlap(p.wr, ins.rd + ins.wr):
                        req = max(req, (5, 8, 12, 20)[k])
                    if overlap(p.mC, ins.wr):
                        req = max(req, (1, 3, 7, 15)[k])
            if p.kind == 'vmem' and len(p.store_data) >= 3 and overlap(p.store_data, ins.wr):
                req = max(req, 2)
            if p.kind == 'ds' and ins.kind == 'valu' and p.op in ('ds_write_b128', 'ds_write_b96') and overlap(p.rd, ins.wr):
                req = max(req, 2)
            if p.kind == 'salu' and overlap(sw, regs_of('m0')) and (ins.lds_dma or 'addtid' in ins.op):
                req = max(req, 1)
            need = max(need, req - dist)
            dist += p.ws
            if dist >= 20:
                break
        return need

    def _check_pending(self, ins):
        touched = set(ins.rd) | set(ins.wr)
        for tag, regs in self.st.vm:
            if touched & set(regs):
                raise RuntimeError(f'use of pending vmem regs (tag {tag}) in: {ins.text}')
        for tag, regs, _ in self.st.lgkm:
            if touched & set(regs):
                raise RuntimeError(f'use of pending lgkm regs (tag {tag}) in: {ins.text}')

    def __call__(self, text, tag=None):
        for line in text.strip().split('\n'):
            line = line.strip()
            if not line or line.startswith(';'):
                if line:
                    self.lines.append('    ' + line)
                continue
            if line.endswith(':'):
                self.label(line[:-1])
                continue
            self._emit(line, tag)

    def _emit(self, line, tag):
        ins = Ins(line)
        if ins.op == 's_waitcnt':
            m = re.search(r'vmcnt\((\d+)\)', line)
            if m:
                n = int(m.group(1))
                assert n <= 63
                while len(self.st.vm) > n:
                    self.st.vm.pop(0)
            m = re.search(r'lgkmcnt\((\d+)\)', line)
            if m:
                n = int(m.group(1))
                assert n <= 15
                if n > 0:
                    assert not any(x[2] for x in self.st.lgkm), 'counted lgkmcnt with SMEM outstanding'
                while len(self.st.lgkm) > n:
                    self.st.lgkm.pop(0)
        if self.check:
            self._check_pending(ins)
        need = self._need(ins)
        while need > 0:
            k = min(need, 16)
            nop = Ins(f's_nop {k - 1}')
            self.lines.append(f'    s_nop {k - 1}')
            self.st.hist.append(nop)
            self.nops_inserted += 1
            need -= k
        self.lines.append('    ' + line)
        self.st.hist.append(ins)
        if len(self.st.hist) > 24:
            self.st.hist.pop(0)
        for r in ins.rd + ins.wr:
            if r[0] == 'v':
                self.max_v = max(self.max_v, r[1])
            if r[0] == 's' and isinstance(r[1], int):
                self.max_s = max(self.max_s, r[1])
        if ins.kind == 'vmem':
            self.st.vm.append((tag, list(ins.wr)))
            assert len(self.st.vm) <= 64, 'more than 63 vmem ops outstanding'
        elif ins.kind == 'ds':
            self.st.lgkm.append((tag, list(ins.wr), False))
        elif ins.kind == 'smem':
            self.st.lgkm.append((tag, list(ins.wr), True))

    def wait_vm(self, tag):
        idx = [i for i, (t, _) in enumerate(self.st.vm) if t == tag]
        if not idx:
            return
        n = len(self.st.vm) - 1 - idx[-1]
        self(f's_waitcnt vmcnt({n})')

    def wait_vm_n(self, n):
        if len(self.st.vm) > n:
            self(f's_waitcnt vmcnt({n})')

    def wait_lgkm(self, tag=None):
        if tag is None or any(x[2] for x in self.st.lgkm):
            self('s_waitcnt lgkmcnt(0)')
            return
        idx = [i for i, x in enumerate(self.st.lgkm) if x[0] == tag]
        if not idx:
            return
        n = len(self.st.lgkm) - 1 - idx[-1]
        self(f's_waitcnt lgkmcnt({min(n, 15)})')

    def text(self):
        return '\n'.join(self.lines) + '\n'


def kernel_file(header, launches, kernels):
    out = [header.rstrip('\n')]
    out += launches
    out.append('.amdgcn_target "amdgcn-amd-amdhsa--gfx950"')
    out.append('.text')
    for name, body, *_ in kernels:
        out.append(f'.globl {name}')
        out.append('.p2align 8')
        out.append(f'.type {name},@function')
        out.append(f'{name}:')
        out.append(body.rstrip('\n'))
    out.append('.section .rodata,"a"')
    for name, body, vgpr, sgpr, accum in kernels:
        out.append('.p2align 6')
        out.append(f'.amdhsa_kernel {name}')
        out.append(f'  .amdhsa_next_free_vgpr {vgpr}')
        out.append(f'  .amdhsa_next_free_sgpr {sgpr}')
        out.append(f'  .amdhsa_accum_offset {accum}')
        out.append('  .amdhsa_group_segment_fixed_size 0')
        out.append('  .amdhsa_kernarg_size 104')
        out.append('  .amdhsa_user_sgpr_count 2')
        out.append('  .amdhsa_user_sgpr_kernarg_segment_ptr 1')
        out.append('  .amdhsa_system_sgpr_workgroup_id_x 1')
        out.append('  .amdhsa_float_denorm_mode_32 3')
        out.append('.end_amdhsa_kernel')
    return '\n'.join(out) + '\n'
```

```python
import sys
from asmgen import Asm, kernel_file

NAME = 'adaLN_cond__gqa_block_cached__dense_activation_relu__decode'
HDR = open('cdna_kernels/' + NAME + '.s.ref').read().split('; Override launch')[0]

WS_E = 0
WS_H = 0x1000
WS_ST = 0x8000
WS_M = 0x10000
WS_Q = 0x20000
WS_Y = 0x40000
WS_O = 0x80000
WS_Z = 0x100000
WS_SIZE = 0x200000
TS_OFF = 128 << 20

L_QF = 0
L_FLAG = 0x400
L_CNT = 0x408
L_SM = 0x480
L_SL = 0x500
L_LNS = 0x580
L_PRIV = 0x600
L_X2 = 0xA00
L_UP = 0x1200
L_YP = 0x1A00
L_SILU = 0x2A00
L_XN = L_SILU + 8 * 1056
L_OP = 0x6C00
L_END = L_OP + 8 * 2304

LOG2E = 0x3fb8aa3b
SCALE = 0x3db504f3
EPS = 0x3727c5ac

vL, vK, vV, vA1, vA2, vM, vLs, vMask = range(8)
SEL = 8
QF = 12
OA = 16
C0 = 24
cX, cGA, cCB, cSB, cGB, cF, cFW, cT = range(24, 32)
SP = 32
BUF = 48


def q(i):
    return BUF + 4 * i


def vq(i, n=4):
    return f'v[{q(i)}:{q(i) + n - 1}]'


def vr(a, n):
    return f'v[{a}:{a + n - 1}]'


sK, sV, sWS, sWO, sW1, sW2, sX, sC, sWP, sOUT, sDBG, sTS = [f's[{32 + 4 * i}:{35 + 4 * i}]' for i in range(12)]
sKvh, sB, sSp, sR, sWave = 's80', 's81', 's82', 's83', 's84'
sT = ['s85', 's86', 's87', 's88']
sSo, sCnt = 's90', 's91'
sPlo, sPhi = 's92', 's93'
sL2E, sTmp, sTmp2, sTmp3 = 's94', 's95', 's96', 's97'
sJ = 's98'
sTag = 's89'
DPP = 'row_mask:0xf bank_mask:0xf'
SPIN = 100000


class Gen:
    def __init__(self, W=3, WAUX=40, NQV=8, kv='nt', wt='', pw='', ts=False, lds=None, wper=3, jstat=23):
        self.W, self.WAUX, self.NQV, self.kv, self.wt, self.pw, self.ts = W, WAUX, NQV, kv, wt, pw, ts
        self.wper = wper
        self.jstat = jstat
        self.lds = lds or L_END
        self.a = Asm()
        self.nts = 12

    def srd(self, name, lo, hi, size):
        a = self.a
        n = int(name[2:].split(':')[0])
        a(f's_mov_b32 s{n}, {lo}')
        a(f's_mov_b32 s{n + 1}, {hi}')
        a(f's_mov_b32 s{n + 2}, {size}')
        a(f's_mov_b32 s{n + 3}, 0x20000')

    def srd_off(self, name, lo, hi, off, size):
        a = self.a
        n = int(name[2:].split(':')[0])
        a(f's_add_u32 s{n}, {lo}, {off}')
        a(f's_addc_u32 s{n + 1}, {hi}, 0')
        a(f's_mov_b32 s{n + 2}, {size}')
        a(f's_mov_b32 s{n + 3}, 0x20000')

    def stamp(self, i):
        if not self.ts:
            return
        a = self.a
        a.wait_lgkm()
        a(f's_memrealtime s[{4 + 2 * i}:{5 + 2 * i}]')
        a('s_waitcnt lgkmcnt(0)')

    def stamps_out(self):
        if not self.ts:
            return
        a = self.a
        a('s_mov_b64 exec, -1')
        a('s_waitcnt vmcnt(0) lgkmcnt(0)')
        a('s_lshl_b32 s95, s2, 3')
        a(f's_add_u32 s95, s95, {sWave}')
        a(f's_mul_i32 s95, s95, {self.nts * 8}')
        a('v_mov_b32 v46, s95')
        for i in range(self.nts):
            a(f'v_mov_b32 v44, s{4 + 2 * i}')
            a(f'v_mov_b32 v45, s{5 + 2 * i}')
            a(f'buffer_store_dwordx2 v[44:45], v46, {sTS}, 0 offen offset:{8 * i}')
            a('s_waitcnt vmcnt(0)')

    def ld(self, dst, n, vaddr, srd, off, flags, tag):
        a = self.a
        op = {1: 'buffer_load_dword', 2: 'buffer_load_dwordx2', 4: 'buffer_load_dwordx4'}[n]
        d = f'v{dst}' if n == 1 else vr(dst, n)
        hi, lo = off & ~4095, off & 4095
        if hi:
            a(f's_mov_b32 {sSo}, {hi}')
            so = sSo
        else:
            so = '0'
        a(f'{op} {d}, v{vaddr}, {srd}, {so} offen offset:{lo} {flags}'.rstrip(), tag=tag)

    def spin_begin(self):
        self.a(f's_mov_b32 {sCnt}, {SPIN}')

    def spin_back(self, again, cond_branch, sleep=0):
        a = self.a
        done = a.newlabel('done')
        a(f'{cond_branch} {done}')
        if sleep:
            a(f's_sleep {sleep}')
        a(f's_sub_u32 {sCnt}, {sCnt}, 1')
        a(f's_cbranch_scc0 {again}')
        del a.st.hist[-(3 if sleep else 2):]
        a.label(done)

    def tagcheck(self, quads, acc, clean=True):
        a = self.a
        first = True
        for r in quads:
            for j in range(4):
                a(f'v_xor_b32 v{r + j}, {sT[j]}, v{r + j}')
            if first:
                a(f'v_or3_b32 v{acc}, v{r}, v{r + 1}, v{r + 2}')
                a(f'v_or_b32 v{acc}, v{acc}, v{r + 3}')
                first = False
            else:
                a(f'v_or3_b32 v{acc}, v{acc}, v{r}, v{r + 1}')
                a(f'v_or3_b32 v{acc}, v{acc}, v{r + 2}, v{r + 3}')
        a(f'v_and_b32 v{acc}, 0xff, v{acc}')
        a(f'v_cmp_ne_u32 vcc, 0, v{acc}')

    def poll(self, loads, quads, acc, sleep=0, first_done=False):
        a = self.a
        again = a.newlabel('poll')
        self.spin_begin()
        if first_done:
            ok = a.newlabel('ok')
            self.tagcheck(quads, acc)
            a(f's_cbranch_vccz {ok}')
            st = a.snapshot()
            a.label(again)
            if sleep:
                a(f's_sleep {sleep}')
            loads()
            a('s_waitcnt vmcnt(0)')
            self.tagcheck(quads, acc)
            self.spin_back(again, 's_cbranch_vccz')
            hist = a.st.hist
            a.restore(st)
            a.st.hist = hist
            a.label(ok)
            a('s_nop 1')
            return
        a.label(again)
        loads()
        a('s_waitcnt vmcnt(0)')
        self.tagcheck(quads, acc)
        self.spin_back(again, 's_cbranch_vccz', sleep)

    def bf(self, d, s):
        self.a(f'v_cvt_pk_bf16_f32 v{d}, 0, v{s}')

    def row_sum(self, v, op='v_add_f32'):
        for r in (8, 4, 2, 1):
            self.a(f'{op}_dpp v{v}, v{v}, v{v} row_ror:{r} {DPP}')

    def cross_rows(self, v, t, op='v_add_f32'):
        a = self.a
        a(f'v_mov_b32 v{t}, v{v}')
        a(f'v_permlane16_swap_b32 v{t}, v{v}')
        a(f'{op} v{v}, v{v}, v{t}')
        a(f'v_mov_b32 v{t}, v{v}')
        a(f'v_permlane32_swap_b32 v{t}, v{v}')
        a(f'{op} v{v}, v{v}, v{t}')

    def tr_reduce(self, r):
        a = self.a
        a(f'v_permlane32_swap_b32 v{r}, v{r + 2}')
        a(f'v_permlane32_swap_b32 v{r + 1}, v{r + 3}')
        a(f'v_add_f32 v{r}, v{r}, v{r + 2}')
        a(f'v_add_f32 v{r + 1}, v{r + 1}, v{r + 3}')
        a(f'v_permlane16_swap_b32 v{r}, v{r + 1}')
        a(f'v_add_f32 v{r}, v{r}, v{r + 1}')

    def set_tag_bytes(self):
        a = self.a
        a(f's_and_b32 {sT[0]}, {sTag}, 0xff')
        a(f's_bfe_u32 {sT[1]}, {sTag}, 0x80008')
        a(f's_bfe_u32 {sT[2]}, {sTag}, 0x80010')
        a(f's_lshr_b32 {sT[3]}, {sTag}, 24')

    def get_tag_from_dbg(self, r):
        a = self.a
        again = a.newlabel('tag')
        self.spin_begin()
        a(f'v_mov_b32 v{r + 2}, 0')
        a.label(again)
        a(f'buffer_load_dwordx2 {vr(r, 2)}, v{r + 2}, {sDBG}, 0 offen sc1')
        a('s_waitcnt vmcnt(0)')
        a(f'v_readfirstlane_b32 {sTmp}, v{r + 1}')
        a(f'v_readfirstlane_b32 {sTag}, v{r}')
        a(f's_cmp_eq_u32 {sTmp}, 1')
        self.spin_back(again, 's_cbranch_scc1')
        self.set_tag_bytes()

    def prework(self, rc, rx, t):
        a = self.a
        skip = a.newlabel('nopre')
        a(f's_cmp_ge_u32 {sR}, 12')
        a(f's_cbranch_scc1 {skip}')
        for j in range(4):
            a(f'v_lshlrev_b32 v{t + 2 * j}, 16, v{rc + j}')
            a(f'v_and_b32 v{t + 2 * j + 1}, 0xffff0000, v{rc + j}')
        for j in range(8):
            a(f'v_mul_f32 v{t + 8 + j}, 0xbfb8aa3b, v{t + j}')
        for j in range(8):
            a(f'v_min_f32 v{t + 8 + j}, 0x42fc0000, v{t + 8 + j}')
        for j in range(8):
            a(f'v_exp_f32 v{t + 8 + j}, v{t + 8 + j}')
        for j in range(8):
            a(f'v_add_f32 v{t + 8 + j}, 1.0, v{t + 8 + j}')
        for h in range(2):
            for j in range(4):
                a(f'v_rcp_f32 v{t + 16 + j}, v{t + 8 + 4 * h + j}')
            for j in range(4):
                a(f'v_mul_f32 v{rc + j}, v{t + 4 * h + j}, v{t + 16 + j}')
            for j in range(4):
                a(f'v_fma_f32 v{t + 4 * h + j}, -v{rc + j}, v{t + 8 + 4 * h + j}, v{t + 4 * h + j}')
            for j in range(4):
                a(f'v_fma_f32 v{t + 4 * h + j}, v{t + 4 * h + j}, v{t + 16 + j}, v{rc + j}')
        for j in range(4):
            a(f'v_cvt_pk_bf16_f32 v{rc + j}, v{t + 2 * j}, v{t + 2 * j + 1}')
        a(f's_mul_i32 {sTmp}, {sWave}, 1056')
        a(f'v_lshlrev_b32 v{t + 16}, 4, v{vL}')
        a(f'v_add_u32 v{t + 16}, {sTmp}, v{t + 16}')
        a(f'ds_write_b128 v{t + 16}, {vr(rc, 4)} offset:{L_SILU}')
        a(f's_cmp_ge_u32 {sR}, 4')
        a(f's_cbranch_scc1 {skip}')
        for j in range(4):
            a(f'v_lshlrev_b32 v{t + 2 * j}, 16, v{rx + j}')
            a(f'v_and_b32 v{t + 2 * j + 1}, 0xffff0000, v{rx + j}')
        s, u = t + 17, t + 18
        a(f'v_add_f32 v{s}, v{t}, v{t + 1}')
        for j in range(2, 8):
            a(f'v_add_f32 v{s}, v{s}, v{t + j}')
        self.row_sum(s)
        self.cross_rows(s, u)
        a(f'v_mul_f32 v{s}, 0x3b000000, v{s}')
        for j in range(8):
            a(f'v_sub_f32 v{t + 8 + j}, v{t + j}, v{s}')
        w = t + 19
        a(f'v_mul_f32 v{w}, v{t + 8}, v{t + 8}')
        for j in range(1, 8):
            a(f'v_fmac_f32 v{w}, v{t + 8 + j}, v{t + 8 + j}')
        self.row_sum(w)
        self.cross_rows(w, u)
        a(f'v_mul_f32 v{w}, 0x3b000000, v{w}')
        self.bf(s, s)
        self.bf(w, w)
        a(f'v_add_f32 v{w}, {EPS}, v{w}')
        self.bf(w, w)
        a(f'v_sqrt_f32 v{w}, v{w}')
        self.bf(w, w)
        a(f'v_rcp_f32 v{w}, v{w}')
        for j in range(8):
            a(f'v_sub_f32 v{t + j}, v{t + j}, v{s}')
        for j in range(8):
            self.bf(t + j, t + j)
        for j in range(8):
            a(f'v_mul_f32 v{t + j}, v{t + j}, v{w}')
        for j in range(4):
            a(f'v_cvt_pk_bf16_f32 v{rx + j}, v{t + 2 * j}, v{t + 2 * j + 1}')
        a(f'ds_write_b128 v{t + 16}, {vr(rx, 4)} offset:{L_XN}')
        a.label(skip)
        a('s_waitcnt lgkmcnt(0)')

    def perm8(self, src, dE, dO):
        a = self.a
        for j in range(4):
            a(f'v_perm_b32 v{dE + j}, v{src + 2 * j + 1}, v{src + 2 * j}, {sPlo}')
            a(f'v_perm_b32 v{dO + j}, v{src + 2 * j + 1}, v{src + 2 * j}, {sPhi}')

    def wp_loads(self, t, pitch):
        for i in range(8):
            self.ld(q(0) + 8 * (t % 8) + i, 1, vA1, sWP, (32 * t + i) * pitch, self.pw, ('wp', t))

    def publish_natural(self, base_reg_addr):
        a = self.a
        g = q(48)
        for r in range(8):
            self.bf(OA + r, OA + r)
        for k in range(2):
            a(f'v_or_b32 v{g + 4 * k + 0}, {sT[0]}, v{OA + 2 * k}')
            a(f'v_or_b32 v{g + 4 * k + 1}, {sT[1]}, v{OA + 4 + 2 * k}')
            a(f'v_or_b32 v{g + 4 * k + 2}, {sT[2]}, v{OA + 2 * k + 1}')
            a(f'v_or_b32 v{g + 4 * k + 3}, {sT[3]}, v{OA + 4 + 2 * k + 1}')
        a(f'buffer_store_dwordx4 {vr(g, 4)}, v{base_reg_addr}, {sWS}, 0 offen sc1')
        a(f'buffer_store_dwordx4 {vr(g + 4, 4)}, v{base_reg_addr}, {sWS}, 0 offen offset:16 sc1')

    def oob_if_b_ge8(self, reg, t):
        a = self.a
        a(f'v_and_b32 v{t}, 8, v{vL}')
        a(f'v_lshl_add_u32 v{reg}, v{t}, 24, v{reg}')

    def build(self):
        a = self.a
        W, NQV = self.W, self.NQV
        a('s_cmp_ge_u32 s2, 256')
        a('s_cbranch_scc1 L_end')
        if self.ts:
            a('s_memrealtime s[30:31]')
        a('s_load_dwordx16 s[4:19], s[0:1], 0')
        a('s_load_dwordx8 s[20:27], s[0:1], 64')
        a('s_load_dwordx2 s[28:29], s[0:1], 96')
        a(f'v_lshrrev_b32 v{vK}, 6, v0')
        a(f'v_and_b32 v{vL}, 63, v0')
        a(f'v_readfirstlane_b32 {sWave}, v{vK}')
        a(f's_and_b32 {sKvh}, s2, 7')
        a(f's_lshr_b32 {sR}, s2, 3')
        a(f's_lshr_b32 {sB}, {sR}, 2')
        a(f's_and_b32 {sSp}, {sR}, 3')
        a(f's_lshl_b32 {sJ}, {sKvh}, 2')
        a(f's_add_u32 {sJ}, {sJ}, {sSp}')
        a(f's_mov_b32 {sPlo}, 0x05040100')
        a(f's_mov_b32 {sPhi}, 0x07060302')
        a(f's_mov_b32 {sL2E}, {LOG2E}')
        a(f'v_lshlrev_b32 v{vV}, 10, v{vK}')
        a(f'v_lshl_add_u32 v{vV}, v{vL}, 4, v{vV}')
        a(f'v_lshlrev_b32 v{vK}, 10, v{vK}')
        a(f'v_and_b32 v{vA1}, 3, v{vL}')
        a(f'v_lshl_add_u32 v{vK}, v{vA1}, 4, v{vK}')
        a(f'v_bfe_u32 v{vA2}, v{vL}, 2, 2')
        a(f'v_lshl_add_u32 v{vK}, v{vA2}, 8, v{vK}')
        a(f'v_lshrrev_b32 v{vA2}, 4, v{vL}')
        a(f'v_lshl_add_u32 v{vK}, v{vA2}, 6, v{vK}')
        a(f's_lshl_b32 {sTmp}, {sB}, 23')
        a(f's_lshl_b32 {sTmp2}, {sKvh}, 20')
        a(f's_add_u32 {sTmp}, {sTmp}, {sTmp2}')
        a(f's_lshl_b32 {sTmp2}, {sSp}, 18')
        a(f's_add_u32 {sTmp}, {sTmp}, {sTmp2}')
        a('s_waitcnt lgkmcnt(0)')
        self.srd_off(sK, 's6', 's7', sTmp, 0x40000)
        self.srd(sC, 's20', 's21', 8192)
        self.srd(sX, 's4', 's5', 8192)
        self.srd_off(sV, 's8', 's9', sTmp, 0x40000)
        self.srd(sWS, 's28', 's29', WS_SIZE)
        self.srd(sDBG, 's26', 's27', 256)
        self.srd(sOUT, 's24', 's25', 8192)
        a(f's_lshl_b32 {sTmp}, {sKvh}, 19')
        a(f's_lshl_b32 {sTmp2}, {sSp}, 8')
        a(f's_add_u32 {sTmp}, {sTmp}, {sTmp2}')
        a(f's_sub_u32 {sTmp2}, 0x400000, {sTmp}')
        self.srd_off(sWO, 's12', 's13', sTmp, sTmp2)
        a(f's_lshl_b32 {sTmp}, {sJ}, 7')
        a(f's_sub_u32 {sTmp2}, 0x1c0000, {sTmp}')
        a(f's_cmp_lt_u32 {sJ}, 28')
        a(f's_cselect_b32 {sTmp2}, {sTmp2}, 0')
        a(f's_cselect_b32 {sTmp}, {sTmp}, 0')
        self.srd_off(sW1, 's16', 's17', sTmp, sTmp2)
        a(f's_lshl_b32 {sTmp}, {sJ}, 16')
        a(f's_cmp_lt_u32 {sJ}, 28')
        a(f's_cselect_b32 {sTmp2}, 0x10000, 0')
        a(f's_cselect_b32 {sTmp}, {sTmp}, 0')
        self.srd_off(sW2, 's18', 's19', sTmp, sTmp2)
        a(f's_cmp_lt_u32 {sR}, 12')
        a('s_cselect_b32 s64, s22, s10')
        a('s_cselect_b32 s65, s23, s11')
        a('s_mov_b32 s66, 0x400000')
        a('s_cselect_b32 s66, 0x300000, s66')
        a('s_mov_b32 s67, 0x20000')
        if self.ts:
            self.srd_off(sTS, 's28', 's29', TS_OFF, 0x100000)
            for i in range(self.nts):
                a(f's_mov_b64 s[{4 + 2 * i}:{5 + 2 * i}], s[30:31]')
            self.stamp(1)
        a(f'v_mov_b32 v{vMask}, 0xffffff00')
        a(f'v_and_b32 v{cT}, 1, v{vL}')
        a(f'v_lshlrev_b32 v{cT}, 4, v{cT}')
        a(f'v_and_b32 v{cX}, 2, v{vL}')
        a(f'v_cmp_eq_u32 vcc, 0, v{cX}')
        for par, pat in ((0, 0x0d0c), (1, 0x0f0e)):
            a(f'v_mov_b32 v{cX}, {pat}')
            a(f'v_lshlrev_b32 v{cX}, v{cT}, v{cX}')
            a(f'v_cndmask_b32 v{SEL + 2 * par}, 0, v{cX}, vcc')
            a(f'v_cndmask_b32 v{SEL + 2 * par + 1}, v{cX}, 0, vcc')
            a(f'v_xor_b32 v{SEL + 2 * par}, 0x0c0c0c0c, v{SEL + 2 * par}')
            a(f'v_xor_b32 v{SEL + 2 * par + 1}, 0x0c0c0c0c, v{SEL + 2 * par + 1}')
        a(f's_cmp_eq_u32 {sWave}, 0')
        a('s_cbranch_scc1 L_aux')
        st_entry = a.snapshot()

        def kload(i):
            self.ld(q(i), 4, vK, sK, i * 8192, self.kv, ('K', i))

        def vdst(j):
            return q(32 + j) if j < 20 else q(40 + j - 20)

        def vload(j):
            self.ld(vdst(j), 4, vV, sV, j * 8192, self.kv, ('V', j))

        seq = [('K', i) for i in range(32)] + [('V', j) for j in range(NQV)]

        def issue(x):
            (kload if x[0] == 'K' else vload)(x[1])

        self.ld(q(50), 4, vV, sC, 0, '', 'c')
        self.ld(q(51), 4, vV, sX, 0, '', 'x')
        for x in seq[:W]:
            issue(x)
        a.wait_vm('x')
        self.prework(q(50), q(51), q(44))
        a('s_barrier')
        for n in range(W, len(seq)):
            a.wait_vm(seq[n - W])
            issue(seq[n])
        a('s_branch L_join')

        a.restore(st_entry)
        a.label('L_aux')
        a(f'v_mov_b32 v{cX}, 0')
        a(f'v_mov_b32 v{cGA}, 0')
        a(f'v_mov_b32 v{cCB}, 0')
        a(f'v_mov_b32 v{cSB}, 0')
        a(f'ds_write_b128 v{cX}, {vr(cX, 4)} offset:{L_FLAG}')
        a(f'v_and_b32 v{cT}, 15, v{vL}')
        a(f's_cmp_ge_u32 {sR}, 12')
        a('s_cbranch_scc1 L_aux_q')
        st_aux = a.snapshot()
        a(f'buffer_load_dword v{cGB}, v{cX}, {sWS}, 0 offen offset:{WS_E} sc1', tag='E')
        self.ld(q(50), 4, vV, sC, 0, '', 'c')
        self.ld(q(51), 4, vV, sX, 0, '', 'x')
        a(f's_lshl_b32 {sTmp}, {sKvh}, 2')
        a(f's_add_u32 {sTmp}, {sTmp}, {sR}')
        a(f's_lshl_b32 {sTmp}, {sTmp}, 5')
        a(f's_lshl_b32 {sTmp2}, {sKvh}, 3')
        a(f's_add_u32 {sTmp2}, {sTmp2}, {sR}')
        a(f's_lshl_b32 {sTmp2}, {sTmp2}, 6')
        a(f's_add_u32 {sTmp2}, {sTmp2}, {2048 - 4 * 64}')
        a(f's_cmp_lt_u32 {sR}, 4')
        a(f's_cselect_b32 {sTmp}, {sTmp}, {sTmp2}')
        a(f's_cselect_b32 {sTmp2}, {1024 - 32}, 0')
        a(f'v_lshrrev_b32 v{vA2}, 3, v{cT}')
        a(f'v_mul_u32_u24 v{vA2}, {sTmp2}, v{vA2}')
        a(f'v_lshl_add_u32 v{vA2}, v{cT}, 2, v{vA2}')
        a(f'v_lshrrev_b32 v{vA1}, 4, v{vL}')
        a(f'v_mul_u32_u24 v{vA1}, {8 * 6144}, v{vA1}')
        a(f'v_add3_u32 v{vA1}, v{vA1}, v{vA2}, {sTmp}')
        for t in range(7):
            self.wp_loads(t, 6144)
        a.wait_vm('E')
        a(f'v_readfirstlane_b32 {sTmp}, v{cGB}')
        a(f's_add_u32 {sTmp}, {sTmp}, 1')
        a(f's_mul_i32 {sTmp2}, {sTmp}, 0x9e3779b1')
        a(f's_lshr_b32 {sTmp3}, {sTmp2}, 15')
        a(f's_xor_b32 {sTmp2}, {sTmp2}, {sTmp3}')
        a(f's_mul_i32 {sTmp2}, {sTmp2}, 0x85ebca77')
        a(f's_lshr_b32 {sTmp3}, {sTmp2}, 13')
        a(f's_xor_b32 {sTmp2}, {sTmp2}, {sTmp3}')
        a(f'v_mov_b32 v{cX}, {sTmp2}')
        a(f'v_mov_b32 v{cGA}, 1')
        a(f'v_mov_b32 v{cCB}, {sTmp}')
        a(f'v_add_u32 v{cSB}, s2, v{vL}')
        a(f'v_lshlrev_b32 v{cSB}, 22, v{cSB}')
        a(f'buffer_store_dwordx2 {vr(cX, 2)}, v{cSB}, {sDBG}, 0 offen sc1')
        a(f'buffer_store_dword v{cCB}, v{cSB}, {sWS}, 0 offen offset:{WS_E} sc1')
        a.wait_vm('x')
        self.prework(q(50), q(51), q(44))
        a('s_barrier')
        a(f'v_and_b32 v{vA2}, 7, v{vL}')
        a(f'v_mul_u32_u24 v{vA2}, 1056, v{vA2}')
        a(f'v_lshrrev_b32 v{cT}, 4, v{vL}')
        a(f'v_lshl_add_u32 v{vA2}, v{cT}, 4, v{vA2}')
        for t in range(16):
            a(f'ds_read_b128 {vq(16 + t)}, v{vA2} offset:{L_SILU + 64 * t}', tag=('sb', t))
            if t == 7:
                a.wait_lgkm()
        a.wait_lgkm()
        for t in range(16):
            a.wait_vm(('wp', t))
            fe, fo = q(32 + 2 * (t & 1)), q(33 + 2 * (t & 1))
            self.perm8(q(0) + 8 * (t % 8), fe, fo)
            if t + 7 < 16:
                self.wp_loads(t + 7, 6144)
            c0 = '0' if t == 0 else vr(OA, 4)
            c1 = '0' if t == 0 else vr(OA + 4, 4)
            a(f'v_mfma_f32_16x16x32_bf16 {vr(OA, 4)}, {vr(fe, 4)}, {vq(16 + t)}, {c0}')
            a(f'v_mfma_f32_16x16x32_bf16 {vr(OA + 4, 4)}, {vr(fo, 4)}, {vq(16 + t)}, {c1}')
        self.get_tag_from_dbg(q(40))
        self.stamp(2)
        a(f's_cmp_ge_u32 {sR}, 4')
        a('s_cbranch_scc1 L_aux_mod')
        st = a.snapshot()
        a(f's_lshl_b32 {sTmp}, {sKvh}, 2')
        a(f's_add_u32 {sTmp}, {sTmp}, {sR}')
        a(f's_lshl_b32 {sTmp2}, {sTmp}, 5')
        a(f'v_and_b32 v{vA2}, 7, v{vL}')
        a(f'v_mul_u32_u24 v{vA2}, 1056, v{vA2}')
        a(f'v_bfe_u32 v{cT}, v{vL}, 4, 1')
        a(f'v_lshl_add_u32 v{vA2}, v{cT}, 4, v{vA2}')
        a(f'v_add_u32 v{vA2}, {sTmp2}, v{vA2}')
        a(f'ds_read_b128 {vq(40)}, v{vA2} offset:{L_XN}')
        for r in range(8):
            self.bf(OA + r, OA + r)
        for r in range(4):
            a(f'v_permlane32_swap_b32 v{OA + r}, v{OA + 4 + r}')
        a(f'v_lshrrev_b32 v{cX}, 5, v{vL}')
        a(f'v_lshlrev_b32 v{cX}, 4, v{cX}')
        a(f'v_sub_u32 v{cX}, 16, v{cX}')
        for r in range(4):
            a(f'v_add_f32 v{OA + 4 + r}, 1.0, v{OA + 4 + r}')
        for r in range(4):
            self.bf(OA + 4 + r, OA + 4 + r)
        a.wait_lgkm()
        for r in range(4):
            a(f'v_lshlrev_b32 v{q(40) + r}, v{cX}, v{q(40) + r}')
        for r in range(4):
            a(f'v_and_b32 v{q(40) + r}, 0xffff0000, v{q(40) + r}')
        for r in range(4):
            a(f'v_mul_f32 v{q(40) + r}, v{q(40) + r}, v{OA + 4 + r}')
        for r in range(4):
            self.bf(q(40) + r, q(40) + r)
        for r in range(4):
            a(f'v_add_f32 v{q(40) + r}, v{q(40) + r}, v{OA + r}')
        for r in range(4):
            self.bf(q(40) + r, q(40) + r)
        for r in range(4):
            a(f'v_or_b32 v{q(40) + r}, {sT[r]}, v{q(40) + r}')
        a(f's_lshl_b32 {sTmp2}, {sTmp}, 9')
        a(f'v_lshlrev_b32 v{vA2}, 8, v{cT}')
        a(f'v_lshrrev_b32 v{cX}, 5, v{vL}')
        a(f'v_lshl_add_u32 v{vA2}, v{cX}, 7, v{vA2}')
        a(f'v_and_b32 v{cX}, 7, v{vL}')
        a(f'v_lshl_add_u32 v{vA2}, v{cX}, 4, v{vA2}')
        a(f'v_add_u32 v{vA2}, {sTmp2}, v{vA2}')
        self.oob_if_b_ge8(vA2, cX)
        a(f's_mov_b32 {sSo}, {WS_H}')
        a(f'buffer_store_dwordx4 {vq(40)}, v{vA2}, {sWS}, {sSo} offen sc1')
        a('s_branch L_aux_waitq')
        a.restore(st)
        a.label('L_aux_mod')
        a(f's_lshl_b32 {sTmp}, {sKvh}, 3')
        a(f's_add_u32 {sTmp}, {sTmp}, {sR}')
        a(f's_lshl_b32 {sTmp}, {sTmp}, 7')
        a(f's_add_u32 {sTmp}, {sTmp}, {WS_M - 4 * 128}')
        a(f'v_and_b32 v{vA2}, 7, v{vL}')
        a(f'v_lshlrev_b32 v{vA2}, 13, v{vA2}')
        a(f'v_lshrrev_b32 v{cT}, 4, v{vL}')
        a(f'v_lshl_add_u32 v{vA2}, v{cT}, 5, v{vA2}')
        a(f'v_add_u32 v{vA2}, {sTmp}, v{vA2}')
        self.oob_if_b_ge8(vA2, cX)
        self.publish_natural(vA2)
        a('s_branch L_aux_waitq')

        a.restore(st_aux)
        a.label('L_aux_q')
        a(f's_cmp_ge_u32 {sR}, 28')
        a('s_cbranch_scc1 L_aux_idle')
        st = a.snapshot()
        a(f's_lshl_b32 {sTmp}, {sKvh}, 4')
        a(f's_add_u32 {sTmp}, {sTmp}, {sR}')
        a(f's_sub_u32 {sTmp}, {sTmp}, 12')
        a(f's_lshl_b32 {sTmp2}, {sTmp}, 6')
        a(f'v_lshrrev_b32 v{vA1}, 4, v{vL}')
        a(f'v_lshlrev_b32 v{vA1}, 16, v{vA1}')
        a(f'v_lshl_add_u32 v{vA1}, v{cT}, 2, v{vA1}')
        a(f'v_add_u32 v{vA1}, {sTmp2}, v{vA1}')
        for t in range(7):
            self.wp_loads(t, 8192)
        a('s_waitcnt lgkmcnt(0)')
        a('s_barrier')
        for t in range(16):
            a.wait_vm(('wp', t))
            self.perm8(q(0) + 8 * (t % 8), q(16 + 2 * t), q(17 + 2 * t))
            if t + 7 < 16:
                self.wp_loads(t + 7, 8192)
        self.get_tag_from_dbg(q(48))
        a(f'v_lshlrev_b32 v{vA2}, 4, v{vL}')
        a(f'v_add_u32 v{vA2}, {WS_H}, v{vA2}')
        self.poll(lambda: self.ld(q(15), 4, vA2, sWS, 15 * 1024, 'sc1', 'h'), [q(15)], cX, sleep=1)
        self.poll(lambda: [self.ld(q(t), 4, vA2, sWS, t * 1024, 'sc1', 'h') for t in range(16)],
                  [q(t) for t in range(16)], cX)
        self.stamp(2)
        for t in range(16):
            tb = q(48 + 2 * (t & 1))
            for r in range(4):
                a(f'v_mov_b32_dpp v{tb + r}, v{q(t) + r} row_ror:8 {DPP}')
            for r in range(4):
                a(f'v_perm_b32 v{tb + 4 + r}, v{tb + r}, v{q(t) + r}, {sPhi}')
            c0 = '0' if t == 0 else vr(OA, 4)
            c1 = '0' if t == 0 else vr(OA + 4, 4)
            a(f'v_mfma_f32_16x16x32_bf16 {vr(OA, 4)}, {vq(16 + 2 * t)}, {vr(tb + 4, 4)}, {c0}')
            a(f'v_mfma_f32_16x16x32_bf16 {vr(OA + 4, 4)}, {vq(17 + 2 * t)}, {vr(tb + 4, 4)}, {c1}')
        a(f's_lshl_b32 {sTmp}, {sKvh}, 4')
        a(f's_add_u32 {sTmp}, {sTmp}, {sR}')
        a(f's_lshl_b32 {sTmp}, {sTmp}, 7')
        a(f's_add_u32 {sTmp}, {sTmp}, {WS_Q - 12 * 128}')
        a(f'v_and_b32 v{vA2}, 7, v{vL}')
        a(f'v_lshlrev_b32 v{vA2}, 14, v{vA2}')
        a(f'v_lshrrev_b32 v{cT}, 4, v{vL}')
        a(f'v_lshl_add_u32 v{vA2}, v{cT}, 5, v{vA2}')
        a(f'v_add_u32 v{vA2}, {sTmp}, v{vA2}')
        self.oob_if_b_ge8(vA2, cX)
        self.publish_natural(vA2)
        a('s_branch L_aux_waitq')
        a.restore(st)
        a.label('L_aux_idle')
        a('s_waitcnt lgkmcnt(0)')
        a('s_barrier')
        self.get_tag_from_dbg(q(48))

        a.label('L_aux_waitq')
        a('s_nop 4')
        self.stamp(3)
        a(f's_lshl_b32 {sTmp}, {sB}, 14')
        a(f's_lshl_b32 {sTmp2}, {sKvh}, 11')
        a(f's_add_u32 {sTmp}, {sTmp}, {sTmp2}')
        a(f's_add_u32 {sTmp}, {sTmp}, {WS_Q}')
        a(f'v_and_b32 v{vA2}, 3, v{vL}')
        a(f'v_lshlrev_b32 v{vA2}, 5, v{vA2}')
        a(f'v_bfe_u32 v{cT}, v{vL}, 2, 2')
        a(f'v_lshl_add_u32 v{vA2}, v{cT}, 9, v{vA2}')
        a(f'v_lshrrev_b32 v{cT}, 4, v{vL}')
        a(f'v_lshl_add_u32 v{vA2}, v{cT}, 7, v{vA2}')
        a(f'v_add_u32 v{vA2}, {sTmp}, v{vA2}')
        self.poll(lambda: [self.ld(q(50 + k), 4, vA2, sWS, 16 * k, 'sc1', 'q') for k in range(2)],
                  [q(50), q(51)], cX, sleep=1)
        for k in range(4):
            a(f'v_perm_b32 v{QF + k}, v{q(50) + 2 * k + 1}, v{q(50) + 2 * k}, {sPhi}')
        a(f'v_lshlrev_b32 v{vA2}, 4, v{vL}')
        a(f'v_mov_b32 v{cX}, 1')
        a(f'v_mov_b32 v{cGA}, {sTag}')
        a(f'v_mov_b32 v{cT}, 0')
        a(f'ds_write_b128 v{vA2}, {vr(QF, 4)} offset:{L_QF}')
        a(f'ds_write_b64 v{cT}, {vr(cX, 2)} offset:{L_FLAG}')
        self.stamp(4)
        for n, x in enumerate(seq):
            if n >= self.WAUX:
                a.wait_vm(seq[n - self.WAUX])
            issue(x)
        a('s_waitcnt lgkmcnt(0)')

        a.label('L_join')
        self.stamp(5)
        again = a.newlabel('qf')
        self.spin_begin()
        a(f'v_mov_b32 v{cT}, 0')
        a(f'v_lshlrev_b32 v{vA2}, 4, v{vL}')
        a.label(again)
        a(f'ds_read_b64 {vr(cX, 2)}, v{cT} offset:{L_FLAG}')
        a('s_waitcnt lgkmcnt(0)')
        a(f'v_readfirstlane_b32 {sTmp}, v{cX}')
        a(f'v_readfirstlane_b32 {sTag}, v{cGA}')
        a(f's_cmp_eq_u32 {sTmp}, 1')
        self.spin_back(again, 's_cbranch_scc1', 1)
        a(f'ds_read_b128 {vr(QF, 4)}, v{vA2} offset:{L_QF}')
        self.set_tag_bytes()
        a(f'v_lshrrev_b32 v{cT}, 4, v{vL}')
        a(f'v_and_b32 v{cX}, 15, v{vL}')
        a(f's_lshl_b32 {sTmp}, {sWave}, 3')
        a(f'v_add_u32 v{cGA}, {sTmp}, v{cT}')
        a(f'v_lshlrev_b32 v{vK}, 13, v{cGA}')
        a(f'v_lshl_add_u32 v{vK}, v{cX}, 4, v{vK}')
        a(f'v_mul_u32_u24 v{vA1}, {8 * 3584}, v{cGA}')
        a(f'v_lshl_add_u32 v{vA1}, v{cX}, 3, v{vA1}')
        a(f's_lshl_b32 {sTmp}, {sWave}, 7')
        a(f'v_lshlrev_b32 v{vA2}, 13, v{cT}')
        a(f'v_lshl_add_u32 v{vA2}, v{cX}, 3, v{vA2}')
        a(f'v_add_u32 v{vA2}, {sTmp}, v{vA2}')
        a('s_waitcnt lgkmcnt(0)')
        self.stamp(6)

        wl = []
        for u, stg in ((0, 0), (1, 16)):
            for i in range(8):
                wl.append(lambda u=u, stg=stg, i=i: self.ld(q(stg + i), 4, vK, sWO, (32 * u + i) * 1024, self.wt, ('WO', u)))
        for t in range(2):
            for i in range(8):
                wl.append(lambda t=t, i=i: self.ld(q(24) + 16 * t + 2 * i, 2, vA1, sW1, (32 * t + i) * 3584, self.wt, 'W1'))
        for t in range(2):
            for i in range(8):
                wl.append(lambda t=t, i=i: self.ld(q(32) + 16 * t + 2 * i, 2, vA2, sW2, (32 * t + i) * 1024, self.wt, 'W2'))
        wi = [0]

        def wnext(n, limit):
            while n > 0 and wi[0] < min(limit, len(wl)):
                wl[wi[0]]()
                wi[0] += 1
                n -= 1

        def perm_x4(stg, fin):
            for e in range(8):
                for j in range(4):
                    sel = sPhi if e & 1 else sPlo
                    a(f'v_perm_b32 v{q(fin + e) + j}, v{q(stg + 2 * j + 1) + (e >> 1)}, v{q(stg + 2 * j) + (e >> 1)}, {sel}')

        def perm_x2(stg, fin):
            for t in range(2):
                for e in range(4):
                    for j in range(4):
                        sel = sPhi if e & 1 else sPlo
                        s0 = q(stg) + 16 * t + 4 * j + (e >> 1)
                        a(f'v_perm_b32 v{q(fin + 4 * t + e) + j}, v{s0 + 2}, v{s0}, {sel}')

        nv = [NQV]

        def vstep():
            j = nv[0]
            if j > 31:
                return
            if j - W >= 0:
                a.wait_vm(('V', j - W))
            vload(j)
            nv[0] += 1


        def s_mfma(n):
            a.wait_vm(('K', 4 * n + 3))
            for i in range(4 * n, 4 * n + 4):
                a(f'v_mfma_f32_16x16x32_bf16 {vq(i)}, {vq(i)}, {vr(QF, 4)}, 0')

        def s_valu(n):
            g = [q(i) for i in range(4 * n, 4 * n + 4)]
            for r in g:
                a(f'v_mov_b32_dpp v{r}, v{r} quad_perm:[0,0,0,0] {DPP}')
            for k in (1, 2, 3):
                for r in g:
                    a(f'v_add_f32_dpp v{r}, v{r + k}, v{r} quad_perm:[{k},{k},{k},{k}] {DPP}')
            if n == 0:
                a(f'v_max_f32 v{vM}, v{g[0]}, v{g[1]}')
            else:
                a(f'v_max3_f32 v{vM}, v{vM}, v{g[0]}, v{g[1]}')
            a(f'v_max3_f32 v{vM}, v{vM}, v{g[2]}, v{g[3]}')
            for r in g:
                self.bf(r, r)
            for r in g:
                a(f'v_mul_f32 v{r}, {SCALE}, v{r}')
            a(f'v_cvt_pk_bf16_f32 v{SP + 2 * n}, v{g[0]}, v{g[1]}')
            a(f'v_cvt_pk_bf16_f32 v{SP + 2 * n + 1}, v{g[2]}, v{g[3]}')

        s_mfma(0)
        for n in range(8):
            if n + 1 < 8:
                s_mfma(n + 1)
            s_valu(n)
            if n in (1, 3, 5, 7):
                vstep()
                if n >= 3:
                    wnext(self.wper, 8)
        self.cross_rows(vM, cT, 'v_max_f32')
        self.bf(vM, vM)
        a(f'v_mul_f32 v{vM}, {SCALE}, v{vM}')
        self.bf(vM, vM)
        a(f'v_mul_f32 v{cT}, 0xbfb8aa3b, v{vM}')
        a(f'v_mov_b32 v{vLs}, 0')
        tmp = q(8)
        for n in range(4):
            for k in range(4):
                a(f'v_lshlrev_b32 v{tmp + 2 * k}, 16, v{SP + 4 * n + k}')
                a(f'v_and_b32 v{tmp + 2 * k + 1}, 0xffff0000, v{SP + 4 * n + k}')
            for k in range(8):
                a(f'v_fma_f32 v{tmp + k}, v{tmp + k}, {sL2E}, v{cT}')
            for k in range(8):
                a(f'v_exp_f32 v{tmp + k}, v{tmp + k}')
            for k in range(4):
                a(f'v_cvt_pk_bf16_f32 v{SP + 4 * n + k}, v{tmp + 2 * k}, v{tmp + 2 * k + 1}')
            for k in range(0, 8, 2):
                a(f'v_add_f32 v{tmp + k}, v{tmp + k}, v{tmp + k + 1}')
            a(f'v_add_f32 v{tmp}, v{tmp}, v{tmp + 2}')
            a(f'v_add_f32 v{tmp + 4}, v{tmp + 4}, v{tmp + 6}')
            a(f'v_add_f32 v{tmp}, v{tmp}, v{tmp + 4}')
            a(f'v_add_f32 v{vLs}, v{vLs}, v{tmp}')
            if n == 1:
                vstep()
                wnext(self.wper, 16)
        self.cross_rows(vLs, cT)
        a(f'v_bfe_u32 v{cT}, v{vL}, 2, 2')
        a(f'v_lshlrev_b32 v{cT}, 5, v{cT}')
        a(f's_lshl_b32 {sTmp}, {sWave}, 2')
        a(f'v_add_u32 v{cT}, {sTmp}, v{cT}')
        a(f'v_mov_b32 v{cX}, 0')
        a(f'v_mov_b32 v{cGA}, 1')
        a('s_mov_b64 exec, 0x1111')
        a(f'ds_write_b32 v{cT}, v{vM} offset:{L_SM}')
        a(f'ds_write_b32 v{cT}, v{vLs} offset:{L_SL}')
        a('s_mov_b64 exec, 1')
        a(f'ds_add_u32 v{cX}, v{cGA} offset:{L_CNT}')
        a('s_mov_b64 exec, -1')
        self.stamp(7)

        npv = [0]

        def pv(j):
            ar = QF + 2 * (j & 1)
            sp = SP + (j >> 1)
            a(f'v_perm_b32 v{ar}, v{sp}, v{sp}, v{SEL + 2 * (j & 1)}')
            a(f'v_perm_b32 v{ar + 1}, v{sp}, v{sp}, v{SEL + 2 * (j & 1) + 1}')
            a.wait_vm(('V', j))
            c0 = '0' if j == 0 else vr(OA, 4)
            c1 = '0' if j == 0 else vr(OA + 4, 4)
            a(f'v_mfma_f32_16x16x16_bf16 {vr(OA, 4)}, {vr(ar, 2)}, {vr(vdst(j), 2)}, {c0}')
            a(f'v_mfma_f32_16x16x16_bf16 {vr(OA + 4, 4)}, {vr(ar, 2)}, {vr(vdst(j) + 2, 2)}, {c1}')

        def pv_upto(j):
            while npv[0] <= j:
                pv(npv[0])
                npv[0] += 1

        def landed(tag):
            return not any(t == tag for t, _ in a.st.vm)

        done_perm = set()
        misc_done = set()

        def wg_stats():
            a.comment('workgroup max / sum, own rescale factor, publish')
            again = a.newlabel('cnt')
            self.spin_begin()
            a(f'v_mov_b32 v{cT}, 0')
            a.label(again)
            a(f'ds_read_b32 v{cX}, v{cT} offset:{L_CNT}')
            a('s_waitcnt lgkmcnt(0)')
            a(f'v_readfirstlane_b32 {sTmp}, v{cX}')
            a(f's_cmp_eq_u32 {sTmp}, 8')
            self.spin_back(again, 's_cbranch_scc1')
            t = q(48)
            a(f'v_lshrrev_b32 v{cT}, 4, v{vL}')
            a(f'v_lshlrev_b32 v{cT}, 5, v{cT}')
            a(f's_lshl_b32 {sTmp}, {sWave}, 2')
            a(f'v_add_u32 v{cX}, {sTmp}, v{cT}')
            a(f'ds_read_b128 {vr(t, 4)}, v{cT} offset:{L_SM}')
            a(f'ds_read_b128 {vr(t + 4, 4)}, v{cT} offset:{L_SM + 16}')
            a(f'ds_read_b128 {vr(t + 8, 4)}, v{cT} offset:{L_SL}')
            a(f'ds_read_b128 {vr(t + 12, 4)}, v{cT} offset:{L_SL + 16}')
            a(f'ds_read_b32 v{cFW}, v{cX} offset:{L_SM}')
            a('s_waitcnt lgkmcnt(0)')
            a(f'v_max3_f32 v{vM}, v{t}, v{t + 1}, v{t + 2}')
            a(f'v_max3_f32 v{vM}, v{vM}, v{t + 3}, v{t + 4}')
            a(f'v_max3_f32 v{vM}, v{vM}, v{t + 5}, v{t + 6}')
            a(f'v_max_f32 v{vM}, v{vM}, v{t + 7}')
            for k in range(8):
                a(f'v_sub_f32 v{t + k}, v{t + k}, v{vM}')
            a(f'v_sub_f32 v{cFW}, v{cFW}, v{vM}')
            for k in range(8):
                a(f'v_mul_f32 v{t + k}, {sL2E}, v{t + k}')
            a(f'v_mul_f32 v{cFW}, {sL2E}, v{cFW}')
            for k in range(8):
                a(f'v_exp_f32 v{t + k}, v{t + k}')
            a(f'v_exp_f32 v{cFW}, v{cFW}')
            a(f'v_mul_f32 v{vLs}, v{t}, v{t + 8}')
            for k in range(1, 8):
                a(f'v_fmac_f32 v{vLs}, v{t + k}, v{t + 8 + k}')
            a(f'v_or_b32 v{t}, {sT[0]}, v{vM}')
            a(f'v_and_or_b32 v{t + 1}, v{vLs}, v{vMask}, {sT[1]}')
            a(f'v_mov_b32 v{t + 2}, {sT[2]}')
            a(f'v_mov_b32 v{t + 3}, {sT[3]}')
            a(f's_lshl_b32 {sTmp}, {sB}, 5')
            a(f's_add_u32 {sTmp}, {sTmp}, {sJ}')
            a(f's_lshl_b32 {sTmp}, {sTmp}, 6')
            a(f's_add_u32 {sTmp}, {sTmp}, {WS_ST}')
            a(f's_xor_b32 {sTmp2}, {sWave}, 1')
            a(f'v_and_b32 v{cX}, 15, v{vL}')
            a(f'v_add_u32 v{cX}, {sTmp2}, v{cX}')
            a(f'v_lshlrev_b32 v{cX}, 22, v{cX}')
            a(f'v_lshrrev_b32 v{cT}, 1, v{cT}')
            a(f'v_add3_u32 v{cX}, v{cX}, v{cT}, {sTmp}')
            a(f'buffer_store_dwordx4 {vr(t, 4)}, v{cX}, {sWS}, 0 offen sc1')

        def m_loads():
            self.ld(q(32), 4, vA1, sWS, 0, 'sc1', 'M')
            self.ld(q(33), 4, vA1, sWS, 4096, 'sc1', 'M')
            self.ld(q(34), 4, vA1, sWS, 2048, 'sc1', 'M')
            self.ld(q(35), 4, vA2, sWS, 6144, 'sc1', 'M')

        def m_addr():
            a(f's_lshl_b32 {sTmp}, {sB}, 13')
            a(f's_add_u32 {sTmp}, {sTmp}, {WS_M}')
            a(f's_lshl_b32 {sTmp2}, {sWave}, 8')
            a(f's_add_u32 {sTmp2}, {sTmp2}, {sTmp}')
            a(f'v_and_b32 v{vA1}, 15, v{vL}')
            a(f'v_lshlrev_b32 v{vA1}, 4, v{vA1}')
            a(f'v_add_u32 v{vA1}, {sTmp2}, v{vA1}')
            a(f's_lshl_b32 {sTmp2}, {sJ}, 6')
            a(f's_add_u32 {sTmp2}, {sTmp2}, {sTmp}')
            a(f'v_and_b32 v{vA2}, 3, v{vL}')
            a(f'v_lshlrev_b32 v{vA2}, 4, v{vA2}')
            a(f'v_add_u32 v{vA2}, {sTmp2}, v{vA2}')
            a(f's_lshl_b32 {sTmp}, {sB}, 10')
            a(f's_lshl_b32 {sTmp2}, {sWave}, 7')
            a(f's_add_u32 {sTmp}, {sTmp}, {sTmp2}')
            a(f'v_and_b32 v{cX}, 15, v{vL}')
            a(f'v_lshlrev_b32 v{cX}, 3, v{cX}')
            a(f'v_lshrrev_b32 v{cT}, 4, v{vL}')
            a(f'v_lshl_add_u32 v{cX}, v{cT}, 1, v{cX}')
            a(f'v_add_u32 v{cT}, {sTmp}, v{cX}')
            a(f'buffer_load_ushort v{cX}, v{cT}, {sX}, 0 offen', tag='M')

        def m_finish():
            a.wait_vm('M')
            self.poll(m_loads, [q(32), q(33), q(34), q(35)], cT, first_done=True)
            for rho in range(4):
                lo, hi = (0xffff << (16 * rho)) & 0xffffffff, (0xffff << (16 * rho)) >> 32
                a(f's_mov_b32 exec_lo, {lo:#x}')
                a(f's_mov_b32 exec_hi, {hi:#x}')
                a(f'v_mov_b32 v{cGA}, v{q(32) + rho}')
                a(f'v_add_f32 v{cCB}, 1.0, v{q(33) + rho}')
                a(f'v_mov_b32 v{cSB}, v{q(34) + rho}')
                a(f'v_mov_b32 v{cGB}, v{q(35) + rho}')
            a('s_mov_b64 exec, -1')
            self.bf(cCB, cCB)
            a(f'v_lshlrev_b32 v{cX}, 16, v{cX}')

        def st_load():
            self.ld(SP, 4, vK, sWS, 0, 'sc1', 'ST')

        def st_addr():
            a(f's_lshl_b32 {sTmp}, {sB}, 3')
            a(f's_add_u32 {sTmp}, {sTmp}, {sKvh}')
            a(f's_lshl_b32 {sTmp}, {sTmp}, 8')
            a(f's_lshr_b32 {sTmp2}, {sWave}, 1')
            a(f's_lshl_b32 {sTmp2}, {sTmp2}, 4')
            a(f's_add_u32 {sTmp}, {sTmp}, {sTmp2}')
            a(f's_add_u32 {sTmp}, {sTmp}, {WS_ST}')
            a(f'v_lshrrev_b32 v{vK}, 4, v{vL}')
            a(f'v_lshlrev_b32 v{vK}, 6, v{vK}')
            a(f'v_add_u32 v{vK}, {sTmp}, v{vK}')

        while nv[0] <= 31:
            j = nv[0]
            if j >= 20:
                pv_upto(j - 12)
            vstep()
            limit = 48 if npv[0] >= 8 else 32
            wnext(self.wper, limit)
            pv_upto(j - W)
            if 'WO0' not in done_perm and wi[0] >= 8 and landed(('WO', 0)):
                perm_x4(0, 8); done_perm.add('WO0')
            elif 'WO1' not in done_perm and 'WO0' in done_perm and wi[0] >= 16 and landed(('WO', 1)):
                perm_x4(16, 0); done_perm.add('WO1')
            elif 'W1' not in done_perm and 'WO1' in done_perm and wi[0] >= 32 and landed('W1'):
                perm_x2(24, 16); done_perm.add('W1')
            elif 'W2' not in done_perm and 'W1' in done_perm and wi[0] >= 48 and landed('W2'):
                perm_x2(32, 24); done_perm.add('W2')
            if j == self.jstat:
                assert npv[0] >= 20
                wg_stats()
            if 'W2' in done_perm and 'm' not in misc_done:
                m_addr(); m_loads(); misc_done.add('m')
            if j == 30:
                assert wi[0] >= 16
                st_addr(); st_load()
        assert wi[0] == 48 and 'm' in misc_done, (wi[0], done_perm)
        m_finish()
        pv_upto(31)
        self.stamp(8)

        a(f's_mul_i32 {sTmp}, {sWave}, 2304')
        a(f'v_lshlrev_b32 v{cT}, 4, v{vL}')
        a(f'v_add_u32 v{cT}, {sTmp}, v{cT}')
        a(f's_lshl_b32 {sTmp}, {sB}, 3')
        a(f's_add_u32 {sTmp}, {sTmp}, {sKvh}')
        a(f's_lshl_b32 {sTmp}, {sTmp}, 13')
        a(f's_add_u32 {sTmp}, {sTmp}, {WS_O}')
        a(f's_lshl_b32 {sTmp2}, {sWave}, 8')
        a(f's_add_u32 {sTmp2}, {sTmp2}, {sTmp}')
        a(f'v_lshrrev_b32 v{vA1}, 4, v{vL}')
        a(f'v_lshlrev_b32 v{vA1}, 11, v{vA1}')
        a(f'v_and_b32 v{vA2}, 15, v{vL}')
        a(f'v_lshl_add_u32 v{vA1}, v{vA2}, 4, v{vA1}')
        a(f'v_add_u32 v{vA1}, {sTmp2}, v{vA1}')
        for r in range(8):
            a(f'v_mul_f32 v{OA + r}, v{OA + r}, v{cFW}')
        a(f'ds_write_b128 v{cT}, {vr(OA, 4)} offset:{L_OP}')
        a(f'ds_write_b128 v{cT}, {vr(OA + 4, 4)} offset:{L_OP + 1152}')
        a(f's_lshl_b32 {sTmp2}, {sWave}, 6')
        a(f'v_add_u32 v{vA2}, {sTmp2}, v{vL}')
        a(f'v_and_b32 v{vV}, 1, v{vA2}')
        a(f'v_mul_u32_u24 v{vV}, 1152, v{vV}')
        a(f'v_lshrrev_b32 v{vM}, 1, v{vA2}')
        a(f'v_lshl_add_u32 v{vV}, v{vM}, 4, v{vV}')
        a(f's_lshl_b32 {sTmp2}, {sSp}, 11')
        a(f's_add_u32 {sTmp}, {sTmp}, {sTmp2}')
        a(f'v_lshlrev_b32 v{vA2}, 4, v{vA2}')
        a(f'v_add_u32 v{vA2}, {sTmp}, v{vA2}')
        a('s_waitcnt lgkmcnt(0)')
        a('s_barrier')
        a(f's_cmp_ge_u32 {sWave}, 2')
        a('s_cbranch_scc1 L_h1')
        st = a.snapshot()
        for w in range(8):
            a(f'ds_read_b128 {vq(40 + w)}, v{vV} offset:{L_OP + 2304 * w}', tag=('op', w))
        for w in (1, 3, 5, 7):
            a.wait_lgkm(('op', w))
            a(f'v_pk_add_f32 {vr(q(39 + w), 2)}, {vr(q(39 + w), 2)}, {vr(q(40 + w), 2)}')
            a(f'v_pk_add_f32 {vr(q(39 + w) + 2, 2)}, {vr(q(39 + w) + 2, 2)}, {vr(q(40 + w) + 2, 2)}')
            if w in (3, 7):
                a(f'v_pk_add_f32 {vr(q(37 + w), 2)}, {vr(q(37 + w), 2)}, {vr(q(39 + w), 2)}')
                a(f'v_pk_add_f32 {vr(q(37 + w) + 2, 2)}, {vr(q(37 + w) + 2, 2)}, {vr(q(39 + w) + 2, 2)}')
        a(f'v_pk_add_f32 {vr(q(40), 2)}, {vr(q(40), 2)}, {vr(q(44), 2)}')
        a(f'v_pk_add_f32 {vr(q(40) + 2, 2)}, {vr(q(40) + 2, 2)}, {vr(q(44) + 2, 2)}')
        for r in range(4):
            a(f'v_and_or_b32 v{q(40) + r}, v{q(40) + r}, v{vMask}, {sT[r]}')
        a(f'buffer_store_dwordx4 {vq(40)}, v{vA2}, {sWS}, 0 offen sc1')
        hist = a.st.hist
        a.restore(st)
        a.st.hist = hist
        a.label('L_h1')
        self.ld(q(37), 4, vA1, sWS, 0, 'sc1', 'o')
        a.wait_vm('ST')
        self.poll(st_load, [SP], cT, first_done=True)
        t = SP
        a(f'v_mov_b32 v{t + 2}, v{t}')
        self.cross_rows(t + 2, cT, 'v_max_f32')
        a(f'v_sub_f32 v{t}, v{t}, v{t + 2}')
        a(f'v_mul_f32 v{t}, {sL2E}, v{t}')
        a(f'v_exp_f32 v{t}, v{t}')
        a(f'v_mul_f32 v{t + 1}, v{t + 1}, v{t}')
        self.cross_rows(t + 1, cT)
        a(f'v_rcp_f32 v{t + 1}, v{t + 1}')
        a(f'v_mul_f32 v{cF}, v{t}, v{t + 1}')
        a(f's_lshl_b32 {sTmp}, {sWave}, 7')
        a(f's_add_u32 {sTmp}, {sTmp}, {L_PRIV}')
        a(f'v_lshrrev_b32 v{cT}, 4, v{vL}')
        a(f'v_and_b32 v{vM}, 15, v{vL}')
        a(f'v_lshlrev_b32 v{vM}, 3, v{vM}')
        a(f'v_lshl_add_u32 v{vM}, v{cT}, 1, v{vM}')
        a(f'v_add_u32 v{vM}, {sTmp}, v{vM}')
        a(f'v_lshlrev_b32 v{vLs}, 4, v{cT}')
        a(f'v_add_u32 v{vLs}, {sTmp}, v{vLs}')
        a.wait_vm('o')
        self.poll(lambda: self.ld(q(37), 4, vA1, sWS, 0, 'sc1', 'o'), [q(37)], cT, first_done=True)
        self.stamp(9)
        t = q(37)
        for r in range(4):
            a(f'v_mul_f32 v{t + r}, v{t + r}, v{cF}')
        self.tr_reduce(t)
        a(f'v_cvt_pk_bf16_f32 v{t}, v{t}, v{t}')
        a(f'ds_write_b16 v{vM}, v{t}')
        a(f'ds_read_b128 {vq(38)}, v{vLs}', tag='a0')
        a(f'ds_read_b128 {vq(39)}, v{vLs} offset:64', tag='a1')
        a(f's_lshl_b32 {sTmp}, {sWave}, 9')
        a(f's_add_u32 {sTmp}, {sTmp}, {L_YP}')
        a(f'v_and_b32 v{vA2}, 15, v{vL}')
        a(f'v_lshlrev_b32 v{vV}, 5, v{vA2}')
        a(f'v_add_u32 v{vV}, {sTmp}, v{vV}')
        a(f's_lshl_b32 {sTmp}, {sB}, 14')
        a(f's_lshl_b32 {sTmp2}, {sWave}, 8')
        a(f's_add_u32 {sTmp2}, {sTmp2}, {sTmp}')
        a(f's_add_u32 {sTmp2}, {sTmp2}, {WS_Y}')
        a(f'v_lshrrev_b32 v{vA1}, 4, v{vL}')
        a(f'v_lshlrev_b32 v{vA1}, 11, v{vA1}')
        a(f'v_lshl_add_u32 v{vA1}, v{vA2}, 4, v{vA1}')
        a(f'v_add_u32 v{vA1}, {sTmp2}, v{vA1}')
        a.wait_lgkm('a0')
        for e in range(8):
            a(f'v_mfma_f32_16x16x32_bf16 {vq(40 + e)}, {vq(38)}, {vq(8 + e)}, 0')
        a.wait_lgkm('a1')
        for e in range(8):
            a(f'v_mfma_f32_16x16x32_bf16 {vq(40 + e)}, {vq(39)}, {vq(0 + e)}, {vq(40 + e)}')
        a('s_mov_b64 exec, 0xffff')
        for e in range(0, 8, 2):
            a(f'ds_write2_b32 v{vV}, v{q(40 + e)}, v{q(41 + e)} offset0:{e} offset1:{e + 1}')
        a('s_mov_b64 exec, -1')
        a(f's_lshl_b32 {sTmp2}, {sKvh}, 11')
        a(f's_add_u32 {sTmp}, {sTmp}, {sTmp2}')
        a(f's_lshl_b32 {sTmp2}, {sSp}, 9')
        a(f's_add_u32 {sTmp}, {sTmp}, {sTmp2}')
        a(f's_add_u32 {sTmp}, {sTmp}, {WS_Y}')
        a(f'v_lshlrev_b32 v{vV}, 4, v{vL}')
        a(f'v_add_u32 v{vA2}, {sTmp}, v{vV}')
        a('s_waitcnt lgkmcnt(0)')
        a('s_barrier')
        a(f's_cmp_lg_u32 {sWave}, 0')
        a('s_cbranch_scc1 L_h2')
        st = a.snapshot()
        a('s_mov_b64 exec, 0xffffffff')
        for w in range(8):
            a(f'ds_read_b128 {vq(40 + w)}, v{vV} offset:{L_YP + 512 * w}', tag=('yp', w))
        for w in (1, 3, 5, 7):
            a.wait_lgkm(('yp', w))
            a(f'v_pk_add_f32 {vr(q(39 + w), 2)}, {vr(q(39 + w), 2)}, {vr(q(40 + w), 2)}')
            a(f'v_pk_add_f32 {vr(q(39 + w) + 2, 2)}, {vr(q(39 + w) + 2, 2)}, {vr(q(40 + w) + 2, 2)}')
            if w in (3, 7):
                a(f'v_pk_add_f32 {vr(q(37 + w), 2)}, {vr(q(37 + w), 2)}, {vr(q(39 + w), 2)}')
                a(f'v_pk_add_f32 {vr(q(37 + w) + 2, 2)}, {vr(q(37 + w) + 2, 2)}, {vr(q(39 + w) + 2, 2)}')
        a(f'v_pk_add_f32 {vr(q(40), 2)}, {vr(q(40), 2)}, {vr(q(44), 2)}')
        a(f'v_pk_add_f32 {vr(q(40) + 2, 2)}, {vr(q(40) + 2, 2)}, {vr(q(44) + 2, 2)}')
        for r in range(4):
            a(f'v_and_or_b32 v{q(40) + r}, v{q(40) + r}, v{vMask}, {sT[r]}')
        a(f'buffer_store_dwordx4 {vq(40)}, v{vA2}, {sWS}, 0 offen sc1')
        a('s_mov_b64 exec, -1')
        hist = a.st.hist
        a.restore(st)
        a.st.hist = hist
        a.label('L_h2')
        self.poll(lambda: [self.ld(q(36 + k), 4, vA1, sWS, 8192 * k, 'sc1', 'y') for k in range(2)],
                  [q(36), q(37)], cT)
        self.stamp(10)
        t = q(36)
        a(f'v_pk_add_f32 {vr(t, 2)}, {vr(t, 2)}, {vr(t + 4, 2)}')
        a(f'v_pk_add_f32 {vr(t + 2, 2)}, {vr(t + 2, 2)}, {vr(t + 6, 2)}')
        self.tr_reduce(t)
        self.bf(t, t)
        a(f'v_mul_f32 v{t}, v{t}, v{cGA}')
        self.bf(t, t)
        a(f'v_add_f32 v{t}, v{t}, v{cX}')
        self.bf(cX, t)
        a(f'v_mul_f32 v{t + 1}, v{cX}, v{cX}')
        a(f'v_mov_b32 v{t}, v{cX}')
        a(f'v_subrev_u32 v{t + 2}, {L_PRIV}, v{vM}')
        a(f'v_lshlrev_b32 v{t + 2}, 1, v{t + 2}')
        a(f'v_permlane32_swap_b32 v{t}, v{t + 1}')
        a(f'ds_write_b32 v{t + 2}, v{cX} offset:{L_X2}')
        a(f'v_add_f32 v{t}, v{t}, v{t + 1}')
        a(f'v_mov_b32 v{t + 1}, v{t}')
        a(f'v_permlane16_swap_b32 v{t + 1}, v{t}')
        a(f'v_add_f32 v{t}, v{t}, v{t + 1}')
        self.row_sum(t)
        a(f's_lshl_b32 {sTmp}, {sWave}, 2')
        a(f'v_and_b32 v{t + 1}, 32, v{vL}')
        a(f'v_add_u32 v{t + 1}, {sTmp}, v{t + 1}')
        a('s_mov_b32 exec_lo, 1')
        a('s_mov_b32 exec_hi, 1')
        a(f'ds_write_b32 v{t + 1}, v{t} offset:{L_LNS}')
        a('s_mov_b64 exec, -1')
        a(f'v_mov_b32 v{t + 1}, 0')
        a('s_waitcnt lgkmcnt(0)')
        a('s_barrier')
        a(f's_cmp_ge_u32 {sJ}, 28')
        a('s_cbranch_scc1 L_final')
        st_fin = a.snapshot()
        for k in range(4):
            a(f'ds_read_b128 {vq(40 + k)}, v{t + 1} offset:{L_LNS + 16 * k}')
        a(f's_lshl_b32 {sTmp}, {sWave}, 8')
        a(f's_add_u32 {sTmp}, {sTmp}, {L_UP}')
        a(f'v_and_b32 v{vA2}, 15, v{vL}')
        a(f'v_lshlrev_b32 v{vA2}, 4, v{vA2}')
        a(f'v_add_u32 v{vV}, {sTmp}, v{vA2}')
        a(f's_mul_i32 {sTmp2}, {sB}, 28')
        a(f's_add_u32 {sTmp2}, {sTmp2}, {sJ}')
        a(f's_lshl_b32 {sTmp2}, {sTmp2}, 11')
        a(f's_add_u32 {sTmp2}, {sTmp2}, {sTmp}')
        a(f's_add_u32 {sTmp2}, {sTmp2}, {WS_Z - L_UP}')
        a(f'v_add_u32 v{vA1}, {sTmp2}, v{vA2}')
        a(f'v_lshrrev_b32 v{cT}, 4, v{vL}')
        a(f'v_lshl_add_u32 v{vA2}, v{cT}, 9, v{vA2}')
        a('s_waitcnt lgkmcnt(0)')
        s = q(40)
        a(f'v_pk_add_f32 {vr(s, 2)}, {vr(s, 2)}, {vr(s + 2, 2)}')
        a(f'v_pk_add_f32 {vr(s + 4, 2)}, {vr(s + 4, 2)}, {vr(s + 6, 2)}')
        a(f'v_pk_add_f32 {vr(s + 8, 2)}, {vr(s + 8, 2)}, {vr(s + 10, 2)}')
        a(f'v_pk_add_f32 {vr(s + 12, 2)}, {vr(s + 12, 2)}, {vr(s + 14, 2)}')
        a(f'v_pk_add_f32 {vr(s, 2)}, {vr(s, 2)}, {vr(s + 4, 2)}')
        a(f'v_pk_add_f32 {vr(s + 8, 2)}, {vr(s + 8, 2)}, {vr(s + 12, 2)}')
        a(f'v_add_f32 v{s}, v{s}, v{s + 1}')
        a(f'v_add_f32 v{s + 8}, v{s + 8}, v{s + 9}')
        a(f'v_mul_f32 v{s}, 0x3b000000, v{s}')
        a(f'v_mul_f32 v{s + 8}, 0x3b000000, v{s + 8}')
        a(f'v_fma_f32 v{s + 8}, -v{s}, v{s}, v{s + 8}')
        self.bf(s, s)
        a(f'v_max_f32 v{s + 8}, 0, v{s + 8}')
        a(f'v_sub_f32 v{s}, v{cX}, v{s}')
        self.bf(s + 8, s + 8)
        self.bf(s, s)
        a(f'v_add_f32 v{s + 8}, {EPS}, v{s + 8}')
        self.bf(s + 8, s + 8)
        a(f'v_sqrt_f32 v{s + 8}, v{s + 8}')
        self.bf(s + 8, s + 8)
        a(f'v_rcp_f32 v{s + 8}, v{s + 8}')
        a(f'v_mul_f32 v{s}, v{s}, v{s + 8}')
        self.bf(s, s)
        a(f'v_mul_f32 v{s}, v{s}, v{cCB}')
        self.bf(s, s)
        a(f'v_add_f32 v{s}, v{s}, v{cSB}')
        a(f'v_cvt_pk_bf16_f32 v{s}, v{s}, v{s}')
        a(f'ds_write_b16 v{vM}, v{s}')
        a(f'ds_read_b128 {vq(38)}, v{vLs}', tag='a0')
        a(f'ds_read_b128 {vq(39)}, v{vLs} offset:64', tag='a1')
        a.wait_lgkm('a0')
        for e in range(4):
            a(f'v_mfma_f32_16x16x32_bf16 {vq(40 + e)}, {vq(38)}, {vq(16 + e)}, 0')
        a.wait_lgkm('a1')
        for e in range(4):
            a(f'v_mfma_f32_16x16x32_bf16 {vq(40 + e)}, {vq(39)}, {vq(20 + e)}, {vq(40 + e)}')
        a('s_mov_b64 exec, 0xffff')
        a(f'ds_write2_b32 v{vV}, v{q(40)}, v{q(41)} offset0:0 offset1:1')
        a(f'ds_write2_b32 v{vV}, v{q(42)}, v{q(43)} offset0:2 offset1:3')
        a('s_mov_b64 exec, -1')
        a('s_waitcnt lgkmcnt(0)')
        a('s_barrier')
        a(f'ds_read_b128 {vq(36)}, v{vA2} offset:{L_UP}')
        a(f'ds_read_b128 {vq(37)}, v{vA2} offset:{L_UP + 256}')
        a('s_waitcnt lgkmcnt(0)')
        t = q(36)
        a(f'v_pk_add_f32 {vr(t, 2)}, {vr(t, 2)}, {vr(t + 4, 2)}')
        a(f'v_pk_add_f32 {vr(t + 2, 2)}, {vr(t + 2, 2)}, {vr(t + 6, 2)}')
        self.tr_reduce(t)
        a(f'v_max_f32 v{t}, 0, v{t}')
        a(f'v_cvt_pk_bf16_f32 v{t}, v{t}, v{t}')
        a(f'ds_write_b16 v{vM}, v{t}')
        a(f'ds_read_b128 {vq(38)}, v{vLs}', tag='a0')
        a(f'ds_read_b128 {vq(39)}, v{vLs} offset:64', tag='a1')
        a.wait_lgkm('a0')
        for e in range(4):
            a(f'v_mfma_f32_16x16x32_bf16 {vq(40 + e)}, {vq(38)}, {vq(24 + e)}, 0')
        a.wait_lgkm('a1')
        for e in range(4):
            a(f'v_mfma_f32_16x16x32_bf16 {vq(40 + e)}, {vq(39)}, {vq(28 + e)}, {vq(40 + e)}')
        for e in range(4):
            a(f'v_and_or_b32 v{q(36) + e}, v{q(40 + e)}, v{vMask}, {sT[e]}')
        a('s_mov_b64 exec, 0xffff')
        a(f'buffer_store_dwordx4 {vq(36)}, v{vA1}, {sWS}, 0 offen sc1')
        a('s_mov_b64 exec, -1')
        a.label('L_final')
        a(f's_cmp_lg_u32 {sWave}, 0')
        a('s_cbranch_scc1 L_out')
        a(f's_mul_i32 {sTmp}, {sB}, {28 * 2048}')
        a(f's_lshl_b32 {sTmp2}, {sJ}, 6')
        a(f's_add_u32 {sTmp}, {sTmp}, {sTmp2}')
        a(f's_add_u32 {sTmp}, {sTmp}, {WS_Z}')
        a(f'v_and_b32 v{cT}, 3, v{vL}')
        a(f'v_lshrrev_b32 v{vA1}, 2, v{vL}')
        a(f'v_lshlrev_b32 v{vA1}, 11, v{vA1}')
        a(f'v_lshl_add_u32 v{vA1}, v{cT}, 4, v{vA1}')
        a(f'v_add_u32 v{vA1}, {sTmp}, v{vA1}')
        a(f'v_cmp_gt_u32 vcc, 48, v{vL}')
        a(f'v_mov_b32 v{vA2}, 0x8000')
        a(f'v_cndmask_b32 v{vA2}, 0, v{vA2}, vcc')
        a(f'v_cndmask_b32 v{cF}, 0, 1.0, vcc')
        a(f'v_add_u32 v{vA2}, v{vA2}, v{vA1}')
        a(f'v_lshrrev_b32 v{vV}, 4, v{vL}')
        a(f'v_lshl_add_u32 v{vV}, v{cT}, 2, v{vV}')
        a(f's_lshl_b32 {sTmp2}, {sJ}, 4')
        a(f'v_add_u32 v{vV}, {sTmp2}, v{vV}')
        a(f'v_lshlrev_b32 v{vK}, 2, v{vV}')
        a(f'ds_read_b32 v{cX}, v{vK} offset:{L_X2}')
        a(f's_lshl_b32 {sTmp2}, {sB}, 10')
        a(f'v_lshlrev_b32 v{vV}, 1, v{vV}')
        a(f'v_add_u32 v{vV}, {sTmp2}, v{vV}')
        self.poll(lambda: [self.ld(q(44), 4, vA1, sWS, 0, 'sc1', 'z'), self.ld(q(45), 4, vA2, sWS, 0, 'sc1', 'z')],
                  [q(44), q(45)], cT)
        t = q(44)
        for r in range(4):
            a(f'v_fmac_f32 v{t + r}, v{t + 4 + r}, v{cF}')
        self.tr_reduce(t)
        a(f'v_add_f32_dpp v{t}, v{t}, v{t} row_ror:4 {DPP}')
        a(f'v_add_f32_dpp v{t}, v{t}, v{t} row_ror:8 {DPP}')
        self.bf(t, t)
        a(f'v_mul_f32 v{t}, v{t}, v{cGB}')
        self.bf(t, t)
        a('s_waitcnt lgkmcnt(0)')
        a(f'v_add_f32 v{t}, v{t}, v{cX}')
        a(f'v_cvt_pk_bf16_f32 v{t}, v{t}, v{t}')
        a('s_mov_b32 exec_lo, 0x000f000f')
        a('s_mov_b32 exec_hi, 0x000f000f')
        a(f'buffer_store_short v{t}, v{vV}, {sOUT}, 0 offen')
        a.label('L_out')
        self.stamp(11)
        self.stamps_out()
        a.label('L_end')
        a('s_endpgm')
        assert a.max_v <= 255 and a.max_s <= 101
        return kernel_file(HDR, [f'; @launch grid=(256,1,1) block=(512,1,1) lds={self.lds}'],
                           [(NAME + '_kernel', a.text(), 256, 102, 256)])


if __name__ == '__main__':
    import argparse
    ap = argparse.ArgumentParser()
    ap.add_argument('-o', default='cdna_kernels/' + NAME + '.s')
    ap.add_argument('--W', type=int, default=3)
    ap.add_argument('--WAUX', type=int, default=40)
    ap.add_argument('--NQV', type=int, default=8)
    ap.add_argument('--wper', type=int, default=3)
    ap.add_argument('--kv', default='nt')
    ap.add_argument('--wt', default='')
    ap.add_argument('--pw', default='')
    ap.add_argument('--lds', type=int, default=0)
    ap.add_argument('--ts', action='store_true')
    x = ap.parse_args()
    g = Gen(W=x.W, WAUX=x.WAUX, NQV=x.NQV, kv=x.kv, wt=x.wt, pw=x.pw, ts=x.ts, lds=x.lds or None, wper=x.wper)
    open(x.o, 'w').write(g.build())
    print('written', x.o, 'nops', g.a.nops_inserted, 'max v', g.a.max_v, 'max s', g.a.max_s)
```

```python
import sys
from asmgen import Asm, kernel_file

NAME = 'adaLN_cond__gqa_block_cached__dense_activation_relu__decode'
HDR = open('cdna_kernels/' + NAME + '.s.ref').read().split('; Override launch')[0]

WS_E = 0
WS_H = 0x1000
WS_ST = 0x8000
WS_M = 0x10000
WS_Q = 0x20000
WS_Y = 0x40000
WS_O = 0x80000
WS_Z = 0x100000
WS_SIZE = 0x200000
TS_OFF = 128 << 20

L_QF = 0
L_FLAG = 0x400
L_CNT = 0x408
L_SM = 0x480
L_SL = 0x500
L_LNS = 0x580
L_PRIV = 0x600
L_X2 = 0xA00
L_UP = 0x1200
L_YP = 0x1A00
L_SILU = 0x2A00
L_XN = L_SILU + 8 * 1056
L_OP = 0x6C00
L_END = L_OP + 8 * 2304

LOG2E = 0x3fb8aa3b
SCALE = 0x3db504f3
EPS = 0x3727c5ac

vL, vK, vV, vA1, vA2, vM, vLs, vMask = range(8)
SEL = 8
QF = 12
OA = 16
C0 = 24
cX, cGA, cCB, cSB, cGB, cF, cFW, cT = range(24, 32)
SP = 32
BUF = 48


def q(i):
    return BUF + 4 * i


def vq(i, n=4):
    return f'v[{q(i)}:{q(i) + n - 1}]'


def vr(a, n):
    return f'v[{a}:{a + n - 1}]'


sK, sV, sWS, sWO, sW1, sW2, sX, sC, sWP, sOUT, sDBG, sTS = [f's[{32 + 4 * i}:{35 + 4 * i}]' for i in range(12)]
sKvh, sB, sSp, sR, sWave = 's80', 's81', 's82', 's83', 's84'
sT = ['s85', 's86', 's87', 's88']
sSo, sCnt = 's90', 's91'
sPlo, sPhi = 's92', 's93'
sL2E, sTmp, sTmp2, sTmp3 = 's94', 's95', 's96', 's97'
sJ = 's98'
sTag = 's89'
DPP = 'row_mask:0xf bank_mask:0xf'
SPIN = 100000


class Gen:
    def __init__(self, W=3, WAUX=40, NQV=8, kv='nt', wt='', pw='', ts=False, lds=None, wper=3, jstat=23):
        self.W, self.WAUX, self.NQV, self.kv, self.wt, self.pw, self.ts = W, WAUX, NQV, kv, wt, pw, ts
        self.wper = wper
        self.jstat = jstat
        self.lds = lds or L_END
        self.a = Asm()
        self.nts = 12

    def srd(self, name, lo, hi, size):
        a = self.a
        n = int(name[2:].split(':')[0])
        a(f's_mov_b32 s{n}, {lo}')
        a(f's_mov_b32 s{n + 1}, {hi}')
        a(f's_mov_b32 s{n + 2}, {size}')
        a(f's_mov_b32 s{n + 3}, 0x20000')

    def srd_off(self, name, lo, hi, off, size):
        a = self.a
        n = int(name[2:].split(':')[0])
        a(f's_add_u32 s{n}, {lo}, {off}')
        a(f's_addc_u32 s{n + 1}, {hi}, 0')
        a(f's_mov_b32 s{n + 2}, {size}')
        a(f's_mov_b32 s{n + 3}, 0x20000')

    def stamp(self, i):
        if not self.ts:
            return
        a = self.a
        a.wait_lgkm()
        a(f's_memrealtime s[{4 + 2 * i}:{5 + 2 * i}]')
        a('s_waitcnt lgkmcnt(0)')

    def stamps_out(self):
        if not self.ts:
            return
        a = self.a
        if self.ts == 'dbg':
            a('s_mov_b64 exec, 1')
            a('s_waitcnt vmcnt(0) lgkmcnt(0)')
            a('v_mov_b32 v46, 0')
            a('s_not_b32 s95, s4')
            a('v_mov_b32 v44, s95')
            a(f'buffer_atomic_umax v44, v46, {sDBG}, 0 offen offset:8 sc1')
            for i in range(self.nts):
                a(f'v_mov_b32 v{60 + i}, s{4 + 2 * i}')
                a(f'buffer_atomic_umax v{60 + i}, v46, {sDBG}, 0 offen offset:{12 + 4 * i} sc1')
            return
        a('s_mov_b64 exec, -1')
        a('s_waitcnt vmcnt(0) lgkmcnt(0)')
        a('s_lshl_b32 s95, s2, 3')
        a(f's_add_u32 s95, s95, {sWave}')
        a(f's_mul_i32 s95, s95, {self.nts * 8}')
        a('v_mov_b32 v46, s95')
        for i in range(self.nts):
            a(f'v_mov_b32 v44, s{4 + 2 * i}')
            a(f'v_mov_b32 v45, s{5 + 2 * i}')
            a(f'buffer_store_dwordx2 v[44:45], v46, {sTS}, 0 offen offset:{8 * i}')
            a('s_waitcnt vmcnt(0)')

    def ld(self, dst, n, vaddr, srd, off, flags, tag):
        a = self.a
        op = {1: 'buffer_load_dword', 2: 'buffer_load_dwordx2', 4: 'buffer_load_dwordx4'}[n]
        d = f'v{dst}' if n == 1 else vr(dst, n)
        hi, lo = off & ~4095, off & 4095
        if hi:
            a(f's_mov_b32 {sSo}, {hi}')
            so = sSo
        else:
            so = '0'
        a(f'{op} {d}, v{vaddr}, {srd}, {so} offen offset:{lo} {flags}'.rstrip(), tag=tag)

    def spin_begin(self):
        self.a(f's_mov_b32 {sCnt}, {SPIN}')

    def spin_back(self, again, cond_branch, sleep=0):
        a = self.a
        done = a.newlabel('done')
        a(f'{cond_branch} {done}')
        if sleep:
            a(f's_sleep {sleep}')
        a(f's_sub_u32 {sCnt}, {sCnt}, 1')
        a(f's_cbranch_scc0 {again}')
        del a.st.hist[-(3 if sleep else 2):]
        a.label(done)

    def tagcheck(self, quads, acc, clean=True):
        a = self.a
        first = True
        for r in quads:
            for j in range(4):
                a(f'v_xor_b32 v{r + j}, {sT[j]}, v{r + j}')
            if first:
                a(f'v_or3_b32 v{acc}, v{r}, v{r + 1}, v{r + 2}')
                a(f'v_or_b32 v{acc}, v{acc}, v{r + 3}')
                first = False
            else:
                a(f'v_or3_b32 v{acc}, v{acc}, v{r}, v{r + 1}')
                a(f'v_or3_b32 v{acc}, v{acc}, v{r + 2}, v{r + 3}')
        a(f'v_and_b32 v{acc}, 0xff, v{acc}')
        a(f'v_cmp_ne_u32 vcc, 0, v{acc}')

    def poll(self, loads, quads, acc, sleep=0, first_done=False):
        a = self.a
        again = a.newlabel('poll')
        self.spin_begin()
        if first_done:
            ok = a.newlabel('ok')
            self.tagcheck(quads, acc)
            a(f's_cbranch_vccz {ok}')
            st = a.snapshot()
            a.label(again)
            if sleep:
                a(f's_sleep {sleep}')
            loads()
            a('s_waitcnt vmcnt(0)')
            self.tagcheck(quads, acc)
            self.spin_back(again, 's_cbranch_vccz')
            hist = a.st.hist
            a.restore(st)
            a.st.hist = hist
            a.label(ok)
            a('s_nop 1')
            return
        a.label(again)
        loads()
        a('s_waitcnt vmcnt(0)')
        self.tagcheck(quads, acc)
        self.spin_back(again, 's_cbranch_vccz', sleep)

    def bf(self, d, s):
        self.a(f'v_cvt_pk_bf16_f32 v{d}, 0, v{s}')

    def row_sum(self, v, op='v_add_f32'):
        for r in (8, 4, 2, 1):
            self.a(f'{op}_dpp v{v}, v{v}, v{v} row_ror:{r} {DPP}')

    def cross_rows(self, v, t, op='v_add_f32'):
        a = self.a
        a(f'v_mov_b32 v{t}, v{v}')
        a(f'v_permlane16_swap_b32 v{t}, v{v}')
        a(f'{op} v{v}, v{v}, v{t}')
        a(f'v_mov_b32 v{t}, v{v}')
        a(f'v_permlane32_swap_b32 v{t}, v{v}')
        a(f'{op} v{v}, v{v}, v{t}')

    def tr_reduce(self, r):
        a = self.a
        a(f'v_permlane32_swap_b32 v{r}, v{r + 2}')
        a(f'v_permlane32_swap_b32 v{r + 1}, v{r + 3}')
        a(f'v_add_f32 v{r}, v{r}, v{r + 2}')
        a(f'v_add_f32 v{r + 1}, v{r + 1}, v{r + 3}')
        a(f'v_permlane16_swap_b32 v{r}, v{r + 1}')
        a(f'v_add_f32 v{r}, v{r}, v{r + 1}')

    def set_tag_bytes(self):
        a = self.a
        a(f's_and_b32 {sT[0]}, {sTag}, 0xff')
        a(f's_bfe_u32 {sT[1]}, {sTag}, 0x80008')
        a(f's_bfe_u32 {sT[2]}, {sTag}, 0x80010')
        a(f's_lshr_b32 {sT[3]}, {sTag}, 24')

    def get_tag_from_dbg(self, r):
        a = self.a
        again = a.newlabel('tag')
        self.spin_begin()
        a(f'v_mov_b32 v{r + 2}, 0')
        a.label(again)
        a(f'buffer_load_dwordx2 {vr(r, 2)}, v{r + 2}, {sDBG}, 0 offen sc1')
        a('s_waitcnt vmcnt(0)')
        a(f'v_readfirstlane_b32 {sTmp}, v{r + 1}')
        a(f'v_readfirstlane_b32 {sTag}, v{r}')
        a(f's_cmp_eq_u32 {sTmp}, 1')
        self.spin_back(again, 's_cbranch_scc1')
        self.set_tag_bytes()

    def prework(self, rc, rx, t):
        a = self.a
        skip = a.newlabel('nopre')
        a(f's_cmp_ge_u32 {sR}, 12')
        a(f's_cbranch_scc1 {skip}')
        for j in range(4):
            a(f'v_lshlrev_b32 v{t + 2 * j}, 16, v{rc + j}')
            a(f'v_and_b32 v{t + 2 * j + 1}, 0xffff0000, v{rc + j}')
        for j in range(8):
            a(f'v_mul_f32 v{t + 8 + j}, 0xbfb8aa3b, v{t + j}')
        for j in range(8):
            a(f'v_min_f32 v{t + 8 + j}, 0x42fc0000, v{t + 8 + j}')
        for j in range(8):
            a(f'v_exp_f32 v{t + 8 + j}, v{t + 8 + j}')
        for j in range(8):
            a(f'v_add_f32 v{t + 8 + j}, 1.0, v{t + 8 + j}')
        for h in range(2):
            for j in range(4):
                a(f'v_rcp_f32 v{t + 16 + j}, v{t + 8 + 4 * h + j}')
            for j in range(4):
                a(f'v_mul_f32 v{rc + j}, v{t + 4 * h + j}, v{t + 16 + j}')
            for j in range(4):
                a(f'v_fma_f32 v{t + 4 * h + j}, -v{rc + j}, v{t + 8 + 4 * h + j}, v{t + 4 * h + j}')
            for j in range(4):
                a(f'v_fma_f32 v{t + 4 * h + j}, v{t + 4 * h + j}, v{t + 16 + j}, v{rc + j}')
        for j in range(4):
            a(f'v_cvt_pk_bf16_f32 v{rc + j}, v{t + 2 * j}, v{t + 2 * j + 1}')
        a(f's_mul_i32 {sTmp}, {sWave}, 1056')
        a(f'v_lshlrev_b32 v{t + 16}, 4, v{vL}')
        a(f'v_add_u32 v{t + 16}, {sTmp}, v{t + 16}')
        a(f'ds_write_b128 v{t + 16}, {vr(rc, 4)} offset:{L_SILU}')
        a(f's_cmp_ge_u32 {sR}, 4')
        a(f's_cbranch_scc1 {skip}')
        for j in range(4):
            a(f'v_lshlrev_b32 v{t + 2 * j}, 16, v{rx + j}')
            a(f'v_and_b32 v{t + 2 * j + 1}, 0xffff0000, v{rx + j}')
        s, u = t + 17, t + 18
        a(f'v_add_f32 v{s}, v{t}, v{t + 1}')
        for j in range(2, 8):
            a(f'v_add_f32 v{s}, v{s}, v{t + j}')
        self.row_sum(s)
        self.cross_rows(s, u)
        a(f'v_mul_f32 v{s}, 0x3b000000, v{s}')
        for j in range(8):
            a(f'v_sub_f32 v{t + 8 + j}, v{t + j}, v{s}')
        w = t + 19
        a(f'v_mul_f32 v{w}, v{t + 8}, v{t + 8}')
        for j in range(1, 8):
            a(f'v_fmac_f32 v{w}, v{t + 8 + j}, v{t + 8 + j}')
        self.row_sum(w)
        self.cross_rows(w, u)
        a(f'v_mul_f32 v{w}, 0x3b000000, v{w}')
        self.bf(s, s)
        self.bf(w, w)
        a(f'v_add_f32 v{w}, {EPS}, v{w}')
        self.bf(w, w)
        a(f'v_sqrt_f32 v{w}, v{w}')
        self.bf(w, w)
        a(f'v_rcp_f32 v{w}, v{w}')
        for j in range(8):
            a(f'v_sub_f32 v{t + j}, v{t + j}, v{s}')
        for j in range(8):
            self.bf(t + j, t + j)
        for j in range(8):
            a(f'v_mul_f32 v{t + j}, v{t + j}, v{w}')
        for j in range(4):
            a(f'v_cvt_pk_bf16_f32 v{rx + j}, v{t + 2 * j}, v{t + 2 * j + 1}')
        a(f'ds_write_b128 v{t + 16}, {vr(rx, 4)} offset:{L_XN}')
        a.label(skip)
        a('s_waitcnt lgkmcnt(0)')

    def perm8(self, src, dE, dO):
        a = self.a
        for j in range(4):
            a(f'v_perm_b32 v{dE + j}, v{src + 2 * j + 1}, v{src + 2 * j}, {sPlo}')
            a(f'v_perm_b32 v{dO + j}, v{src + 2 * j + 1}, v{src + 2 * j}, {sPhi}')

    def wp_loads(self, t, pitch):
        for i in range(8):
            self.ld(q(0) + 8 * (t % 8) + i, 1, vA1, sWP, (32 * t + i) * pitch, self.pw, ('wp', t))

    def publish_natural(self, base_reg_addr):
        a = self.a
        g = q(48)
        for r in range(8):
            self.bf(OA + r, OA + r)
        for k in range(2):
            a(f'v_or_b32 v{g + 4 * k + 0}, {sT[0]}, v{OA + 2 * k}')
            a(f'v_or_b32 v{g + 4 * k + 1}, {sT[1]}, v{OA + 4 + 2 * k}')
            a(f'v_or_b32 v{g + 4 * k + 2}, {sT[2]}, v{OA + 2 * k + 1}')
            a(f'v_or_b32 v{g + 4 * k + 3}, {sT[3]}, v{OA + 4 + 2 * k + 1}')
        a(f'buffer_store_dwordx4 {vr(g, 4)}, v{base_reg_addr}, {sWS}, 0 offen sc1')
        a(f'buffer_store_dwordx4 {vr(g + 4, 4)}, v{base_reg_addr}, {sWS}, 0 offen offset:16 sc1')

    def oob_if_b_ge8(self, reg, t):
        a = self.a
        a(f'v_and_b32 v{t}, 8, v{vL}')
        a(f'v_lshl_add_u32 v{reg}, v{t}, 24, v{reg}')

    def build(self):
        a = self.a
        W, NQV = self.W, self.NQV
        a('s_cmp_ge_u32 s2, 256')
        a('s_cbranch_scc1 L_end')
        if self.ts:
            a('s_memrealtime s[30:31]')
        a('s_load_dwordx16 s[4:19], s[0:1], 0')
        a('s_load_dwordx8 s[20:27], s[0:1], 64')
        a('s_load_dwordx2 s[28:29], s[0:1], 96')
        a(f'v_lshrrev_b32 v{vK}, 6, v0')
        a(f'v_and_b32 v{vL}, 63, v0')
        a(f'v_readfirstlane_b32 {sWave}, v{vK}')
        a(f's_and_b32 {sKvh}, s2, 7')
        a(f's_lshr_b32 {sR}, s2, 3')
        a(f's_lshr_b32 {sB}, {sR}, 2')
        a(f's_and_b32 {sSp}, {sR}, 3')
        a(f's_lshl_b32 {sJ}, {sKvh}, 2')
        a(f's_add_u32 {sJ}, {sJ}, {sSp}')
        a(f's_mov_b32 {sPlo}, 0x05040100')
        a(f's_mov_b32 {sPhi}, 0x07060302')
        a(f's_mov_b32 {sL2E}, {LOG2E}')
        a(f'v_lshlrev_b32 v{vV}, 10, v{vK}')
        a(f'v_lshl_add_u32 v{vV}, v{vL}, 4, v{vV}')
        a(f'v_lshlrev_b32 v{vK}, 10, v{vK}')
        a(f'v_and_b32 v{vA1}, 3, v{vL}')
        a(f'v_lshl_add_u32 v{vK}, v{vA1}, 4, v{vK}')
        a(f'v_bfe_u32 v{vA2}, v{vL}, 2, 2')
        a(f'v_lshl_add_u32 v{vK}, v{vA2}, 8, v{vK}')
        a(f'v_lshrrev_b32 v{vA2}, 4, v{vL}')
        a(f'v_lshl_add_u32 v{vK}, v{vA2}, 6, v{vK}')
        a(f's_lshl_b32 {sTmp}, {sB}, 23')
        a(f's_lshl_b32 {sTmp2}, {sKvh}, 20')
        a(f's_add_u32 {sTmp}, {sTmp}, {sTmp2}')
        a(f's_lshl_b32 {sTmp2}, {sSp}, 18')
        a(f's_add_u32 {sTmp}, {sTmp}, {sTmp2}')
        a('s_waitcnt lgkmcnt(0)')
        self.srd_off(sK, 's6', 's7', sTmp, 0x40000)
        self.srd(sC, 's20', 's21', 8192)
        self.srd(sX, 's4', 's5', 8192)
        self.srd_off(sV, 's8', 's9', sTmp, 0x40000)
        self.srd(sWS, 's28', 's29', WS_SIZE)
        self.srd(sDBG, 's26', 's27', 256)
        self.srd(sOUT, 's24', 's25', 8192)
        a(f's_lshl_b32 {sTmp}, {sKvh}, 19')
        a(f's_lshl_b32 {sTmp2}, {sSp}, 8')
        a(f's_add_u32 {sTmp}, {sTmp}, {sTmp2}')
        a(f's_sub_u32 {sTmp2}, 0x400000, {sTmp}')
        self.srd_off(sWO, 's12', 's13', sTmp, sTmp2)
        a(f's_lshl_b32 {sTmp}, {sJ}, 7')
        a(f's_sub_u32 {sTmp2}, 0x1c0000, {sTmp}')
        a(f's_cmp_lt_u32 {sJ}, 28')
        a(f's_cselect_b32 {sTmp2}, {sTmp2}, 0')
        a(f's_cselect_b32 {sTmp}, {sTmp}, 0')
        self.srd_off(sW1, 's16', 's17', sTmp, sTmp2)
        a(f's_lshl_b32 {sTmp}, {sJ}, 16')
        a(f's_cmp_lt_u32 {sJ}, 28')
        a(f's_cselect_b32 {sTmp2}, 0x10000, 0')
        a(f's_cselect_b32 {sTmp}, {sTmp}, 0')
        self.srd_off(sW2, 's18', 's19', sTmp, sTmp2)
        a(f's_cmp_lt_u32 {sR}, 12')
        a('s_cselect_b32 s64, s22, s10')
        a('s_cselect_b32 s65, s23, s11')
        a('s_mov_b32 s66, 0x400000')
        a('s_cselect_b32 s66, 0x300000, s66')
        a('s_mov_b32 s67, 0x20000')
        if self.ts:
            self.srd_off(sTS, 's28', 's29', TS_OFF, 0x100000)
            for i in range(self.nts):
                a(f's_mov_b64 s[{4 + 2 * i}:{5 + 2 * i}], s[30:31]')
            self.stamp(1)
        a(f'v_mov_b32 v{vMask}, 0xffffff00')
        a(f'v_and_b32 v{cT}, 1, v{vL}')
        a(f'v_lshlrev_b32 v{cT}, 4, v{cT}')
        a(f'v_and_b32 v{cX}, 2, v{vL}')
        a(f'v_cmp_eq_u32 vcc, 0, v{cX}')
        for par, pat in ((0, 0x0d0c), (1, 0x0f0e)):
            a(f'v_mov_b32 v{cX}, {pat}')
            a(f'v_lshlrev_b32 v{cX}, v{cT}, v{cX}')
            a(f'v_cndmask_b32 v{SEL + 2 * par}, 0, v{cX}, vcc')
            a(f'v_cndmask_b32 v{SEL + 2 * par + 1}, v{cX}, 0, vcc')
            a(f'v_xor_b32 v{SEL + 2 * par}, 0x0c0c0c0c, v{SEL + 2 * par}')
            a(f'v_xor_b32 v{SEL + 2 * par + 1}, 0x0c0c0c0c, v{SEL + 2 * par + 1}')
        a(f's_cmp_eq_u32 {sWave}, 0')
        a('s_cbranch_scc1 L_aux')
        st_entry = a.snapshot()

        def kload(i):
            self.ld(q(i), 4, vK, sK, i * 8192, self.kv, ('K', i))

        def vdst(j):
            return q(32 + j) if j < 20 else q(40 + j - 20)

        def vload(j):
            self.ld(vdst(j), 4, vV, sV, j * 8192, self.kv, ('V', j))

        seq = [('K', i) for i in range(32)] + [('V', j) for j in range(NQV)]

        def issue(x):
            (kload if x[0] == 'K' else vload)(x[1])

        self.ld(q(50), 4, vV, sC, 0, '', 'c')
        self.ld(q(51), 4, vV, sX, 0, '', 'x')
        for x in seq[:W]:
            issue(x)
        a.wait_vm('x')
        self.prework(q(50), q(51), q(44))
        a('s_barrier')
        for n in range(W, len(seq)):
            a.wait_vm(seq[n - W])
            issue(seq[n])
        a('s_branch L_join')

        a.restore(st_entry)
        a.label('L_aux')
        a(f'v_mov_b32 v{cX}, 0')
        a(f'v_mov_b32 v{cGA}, 0')
        a(f'v_mov_b32 v{cCB}, 0')
        a(f'v_mov_b32 v{cSB}, 0')
        a(f'ds_write_b128 v{cX}, {vr(cX, 4)} offset:{L_FLAG}')
        a(f'v_and_b32 v{cT}, 15, v{vL}')
        a(f's_cmp_ge_u32 {sR}, 12')
        a('s_cbranch_scc1 L_aux_q')
        st_aux = a.snapshot()
        a(f'buffer_load_dword v{cGB}, v{cX}, {sWS}, 0 offen offset:{WS_E} sc1', tag='E')
        self.ld(q(50), 4, vV, sC, 0, '', 'c')
        self.ld(q(51), 4, vV, sX, 0, '', 'x')
        a(f's_lshl_b32 {sTmp}, {sKvh}, 2')
        a(f's_add_u32 {sTmp}, {sTmp}, {sR}')
        a(f's_lshl_b32 {sTmp}, {sTmp}, 5')
        a(f's_lshl_b32 {sTmp2}, {sKvh}, 3')
        a(f's_add_u32 {sTmp2}, {sTmp2}, {sR}')
        a(f's_lshl_b32 {sTmp2}, {sTmp2}, 6')
        a(f's_add_u32 {sTmp2}, {sTmp2}, {2048 - 4 * 64}')
        a(f's_cmp_lt_u32 {sR}, 4')
        a(f's_cselect_b32 {sTmp}, {sTmp}, {sTmp2}')
        a(f's_cselect_b32 {sTmp2}, {1024 - 32}, 0')
        a(f'v_lshrrev_b32 v{vA2}, 3, v{cT}')
        a(f'v_mul_u32_u24 v{vA2}, {sTmp2}, v{vA2}')
        a(f'v_lshl_add_u32 v{vA2}, v{cT}, 2, v{vA2}')
        a(f'v_lshrrev_b32 v{vA1}, 4, v{vL}')
        a(f'v_mul_u32_u24 v{vA1}, {8 * 6144}, v{vA1}')
        a(f'v_add3_u32 v{vA1}, v{vA1}, v{vA2}, {sTmp}')
        for t in range(7):
            self.wp_loads(t, 6144)
        a.wait_vm('E')
        a(f'v_readfirstlane_b32 {sTmp}, v{cGB}')
        a(f's_add_u32 {sTmp}, {sTmp}, 1')
        a(f's_mul_i32 {sTmp2}, {sTmp}, 0x9e3779b1')
        a(f's_lshr_b32 {sTmp3}, {sTmp2}, 15')
        a(f's_xor_b32 {sTmp2}, {sTmp2}, {sTmp3}')
        a(f's_mul_i32 {sTmp2}, {sTmp2}, 0x85ebca77')
        a(f's_lshr_b32 {sTmp3}, {sTmp2}, 13')
        a(f's_xor_b32 {sTmp2}, {sTmp2}, {sTmp3}')
        a(f'v_mov_b32 v{cX}, {sTmp2}')
        a(f'v_mov_b32 v{cGA}, 1')
        a(f'v_mov_b32 v{cCB}, {sTmp}')
        a(f'v_add_u32 v{cSB}, s2, v{vL}')
        a(f'v_lshlrev_b32 v{cSB}, 22, v{cSB}')
        a(f'buffer_store_dwordx2 {vr(cX, 2)}, v{cSB}, {sDBG}, 0 offen sc1')
        a(f'buffer_store_dword v{cCB}, v{cSB}, {sWS}, 0 offen offset:{WS_E} sc1')
        a.wait_vm('x')
        self.prework(q(50), q(51), q(44))
        a('s_barrier')
        a(f'v_and_b32 v{vA2}, 7, v{vL}')
        a(f'v_mul_u32_u24 v{vA2}, 1056, v{vA2}')
        a(f'v_lshrrev_b32 v{cT}, 4, v{vL}')
        a(f'v_lshl_add_u32 v{vA2}, v{cT}, 4, v{vA2}')
        for t in range(16):
            a(f'ds_read_b128 {vq(16 + t)}, v{vA2} offset:{L_SILU + 64 * t}', tag=('sb', t))
            if t == 7:
                a.wait_lgkm()
        a.wait_lgkm()
        for t in range(16):
            a.wait_vm(('wp', t))
            fe, fo = q(32 + 2 * (t & 1)), q(33 + 2 * (t & 1))
            self.perm8(q(0) + 8 * (t % 8), fe, fo)
            if t + 7 < 16:
                self.wp_loads(t + 7, 6144)
            c0 = '0' if t == 0 else vr(OA, 4)
            c1 = '0' if t == 0 else vr(OA + 4, 4)
            a(f'v_mfma_f32_16x16x32_bf16 {vr(OA, 4)}, {vr(fe, 4)}, {vq(16 + t)}, {c0}')
            a(f'v_mfma_f32_16x16x32_bf16 {vr(OA + 4, 4)}, {vr(fo, 4)}, {vq(16 + t)}, {c1}')
        self.get_tag_from_dbg(q(40))
        self.stamp(2)
        a(f's_cmp_ge_u32 {sR}, 4')
        a('s_cbranch_scc1 L_aux_mod')
        st = a.snapshot()
        a(f's_lshl_b32 {sTmp}, {sKvh}, 2')
        a(f's_add_u32 {sTmp}, {sTmp}, {sR}')
        a(f's_lshl_b32 {sTmp2}, {sTmp}, 5')
        a(f'v_and_b32 v{vA2}, 7, v{vL}')
        a(f'v_mul_u32_u24 v{vA2}, 1056, v{vA2}')
        a(f'v_bfe_u32 v{cT}, v{vL}, 4, 1')
        a(f'v_lshl_add_u32 v{vA2}, v{cT}, 4, v{vA2}')
        a(f'v_add_u32 v{vA2}, {sTmp2}, v{vA2}')
        a(f'ds_read_b128 {vq(40)}, v{vA2} offset:{L_XN}')
        for r in range(8):
            self.bf(OA + r, OA + r)
        for r in range(4):
            a(f'v_permlane32_swap_b32 v{OA + r}, v{OA + 4 + r}')
        a(f'v_lshrrev_b32 v{cX}, 5, v{vL}')
        a(f'v_lshlrev_b32 v{cX}, 4, v{cX}')
        a(f'v_sub_u32 v{cX}, 16, v{cX}')
        for r in range(4):
            a(f'v_add_f32 v{OA + 4 + r}, 1.0, v{OA + 4 + r}')
        for r in range(4):
            self.bf(OA + 4 + r, OA + 4 + r)
        a.wait_lgkm()
        for r in range(4):
            a(f'v_lshlrev_b32 v{q(40) + r}, v{cX}, v{q(40) + r}')
        for r in range(4):
            a(f'v_and_b32 v{q(40) + r}, 0xffff0000, v{q(40) + r}')
        for r in range(4):
            a(f'v_mul_f32 v{q(40) + r}, v{q(40) + r}, v{OA + 4 + r}')
        for r in range(4):
            self.bf(q(40) + r, q(40) + r)
        for r in range(4):
            a(f'v_add_f32 v{q(40) + r}, v{q(40) + r}, v{OA + r}')
        for r in range(4):
            self.bf(q(40) + r, q(40) + r)
        for r in range(4):
            a(f'v_or_b32 v{q(40) + r}, {sT[r]}, v{q(40) + r}')
        a(f's_lshl_b32 {sTmp2}, {sTmp}, 9')
        a(f'v_lshlrev_b32 v{vA2}, 8, v{cT}')
        a(f'v_lshrrev_b32 v{cX}, 5, v{vL}')
        a(f'v_lshl_add_u32 v{vA2}, v{cX}, 7, v{vA2}')
        a(f'v_and_b32 v{cX}, 7, v{vL}')
        a(f'v_lshl_add_u32 v{vA2}, v{cX}, 4, v{vA2}')
        a(f'v_add_u32 v{vA2}, {sTmp2}, v{vA2}')
        self.oob_if_b_ge8(vA2, cX)
        a(f's_mov_b32 {sSo}, {WS_H}')
        a(f'buffer_store_dwordx4 {vq(40)}, v{vA2}, {sWS}, {sSo} offen sc1')
        a('s_branch L_aux_waitq')
        a.restore(st)
        a.label('L_aux_mod')
        a(f's_lshl_b32 {sTmp}, {sKvh}, 3')
        a(f's_add_u32 {sTmp}, {sTmp}, {sR}')
        a(f's_lshl_b32 {sTmp}, {sTmp}, 7')
        a(f's_add_u32 {sTmp}, {sTmp}, {WS_M - 4 * 128}')
        a(f'v_and_b32 v{vA2}, 7, v{vL}')
        a(f'v_lshlrev_b32 v{vA2}, 13, v{vA2}')
        a(f'v_lshrrev_b32 v{cT}, 4, v{vL}')
        a(f'v_lshl_add_u32 v{vA2}, v{cT}, 5, v{vA2}')
        a(f'v_add_u32 v{vA2}, {sTmp}, v{vA2}')
        self.oob_if_b_ge8(vA2, cX)
        self.publish_natural(vA2)
        a('s_branch L_aux_waitq')

        a.restore(st_aux)
        a.label('L_aux_q')
        a(f's_cmp_ge_u32 {sR}, 28')
        a('s_cbranch_scc1 L_aux_idle')
        st = a.snapshot()
        a(f's_lshl_b32 {sTmp}, {sKvh}, 4')
        a(f's_add_u32 {sTmp}, {sTmp}, {sR}')
        a(f's_sub_u32 {sTmp}, {sTmp}, 12')
        a(f's_lshl_b32 {sTmp2}, {sTmp}, 6')
        a(f'v_lshrrev_b32 v{vA1}, 4, v{vL}')
        a(f'v_lshlrev_b32 v{vA1}, 16, v{vA1}')
        a(f'v_lshl_add_u32 v{vA1}, v{cT}, 2, v{vA1}')
        a(f'v_add_u32 v{vA1}, {sTmp2}, v{vA1}')
        for t in range(7):
            self.wp_loads(t, 8192)
        a('s_waitcnt lgkmcnt(0)')
        a('s_barrier')
        for t in range(16):
            a.wait_vm(('wp', t))
            self.perm8(q(0) + 8 * (t % 8), q(16 + 2 * t), q(17 + 2 * t))
            if t + 7 < 16:
                self.wp_loads(t + 7, 8192)
        self.get_tag_from_dbg(q(48))
        a(f'v_lshlrev_b32 v{vA2}, 4, v{vL}')
        a(f'v_add_u32 v{vA2}, {WS_H}, v{vA2}')
        self.poll(lambda: self.ld(q(15), 4, vA2, sWS, 15 * 1024, 'sc1', 'h'), [q(15)], cX, sleep=1)
        self.poll(lambda: [self.ld(q(t), 4, vA2, sWS, t * 1024, 'sc1', 'h') for t in range(16)],
                  [q(t) for t in range(16)], cX)
        self.stamp(2)
        for t in range(16):
            tb = q(48 + 2 * (t & 1))
            for r in range(4):
                a(f'v_mov_b32_dpp v{tb + r}, v{q(t) + r} row_ror:8 {DPP}')
            for r in range(4):
                a(f'v_perm_b32 v{tb + 4 + r}, v{tb + r}, v{q(t) + r}, {sPhi}')
            c0 = '0' if t == 0 else vr(OA, 4)
            c1 = '0' if t == 0 else vr(OA + 4, 4)
            a(f'v_mfma_f32_16x16x32_bf16 {vr(OA, 4)}, {vq(16 + 2 * t)}, {vr(tb + 4, 4)}, {c0}')
            a(f'v_mfma_f32_16x16x32_bf16 {vr(OA + 4, 4)}, {vq(17 + 2 * t)}, {vr(tb + 4, 4)}, {c1}')
        a(f's_lshl_b32 {sTmp}, {sKvh}, 4')
        a(f's_add_u32 {sTmp}, {sTmp}, {sR}')
        a(f's_lshl_b32 {sTmp}, {sTmp}, 7')
        a(f's_add_u32 {sTmp}, {sTmp}, {WS_Q - 12 * 128}')
        a(f'v_and_b32 v{vA2}, 7, v{vL}')
        a(f'v_lshlrev_b32 v{vA2}, 14, v{vA2}')
        a(f'v_lshrrev_b32 v{cT}, 4, v{vL}')
        a(f'v_lshl_add_u32 v{vA2}, v{cT}, 5, v{vA2}')
        a(f'v_add_u32 v{vA2}, {sTmp}, v{vA2}')
        self.oob_if_b_ge8(vA2, cX)
        self.publish_natural(vA2)
        a('s_branch L_aux_waitq')
        a.restore(st)
        a.label('L_aux_idle')
        a('s_waitcnt lgkmcnt(0)')
        a('s_barrier')
        self.get_tag_from_dbg(q(48))

        a.label('L_aux_waitq')
        a('s_nop 4')
        self.stamp(3)
        a(f's_lshl_b32 {sTmp}, {sB}, 14')
        a(f's_lshl_b32 {sTmp2}, {sKvh}, 11')
        a(f's_add_u32 {sTmp}, {sTmp}, {sTmp2}')
        a(f's_add_u32 {sTmp}, {sTmp}, {WS_Q}')
        a(f'v_and_b32 v{vA2}, 3, v{vL}')
        a(f'v_lshlrev_b32 v{vA2}, 5, v{vA2}')
        a(f'v_bfe_u32 v{cT}, v{vL}, 2, 2')
        a(f'v_lshl_add_u32 v{vA2}, v{cT}, 9, v{vA2}')
        a(f'v_lshrrev_b32 v{cT}, 4, v{vL}')
        a(f'v_lshl_add_u32 v{vA2}, v{cT}, 7, v{vA2}')
        a(f'v_add_u32 v{vA2}, {sTmp}, v{vA2}')
        self.poll(lambda: [self.ld(q(50 + k), 4, vA2, sWS, 16 * k, 'sc1', 'q') for k in range(2)],
                  [q(50), q(51)], cX, sleep=1)
        for k in range(4):
            a(f'v_perm_b32 v{QF + k}, v{q(50) + 2 * k + 1}, v{q(50) + 2 * k}, {sPhi}')
        a(f'v_lshlrev_b32 v{vA2}, 4, v{vL}')
        a(f'v_mov_b32 v{cX}, 1')
        a(f'v_mov_b32 v{cGA}, {sTag}')
        a(f'v_mov_b32 v{cT}, 0')
        a(f'ds_write_b128 v{vA2}, {vr(QF, 4)} offset:{L_QF}')
        a(f'ds_write_b64 v{cT}, {vr(cX, 2)} offset:{L_FLAG}')
        self.stamp(4)
        for n, x in enumerate(seq):
            if n >= self.WAUX:
                a.wait_vm(seq[n - self.WAUX])
            issue(x)
        a('s_waitcnt lgkmcnt(0)')

        a.label('L_join')
        self.stamp(5)
        again = a.newlabel('qf')
        self.spin_begin()
        a(f'v_mov_b32 v{cT}, 0')
        a(f'v_lshlrev_b32 v{vA2}, 4, v{vL}')
        a.label(again)
        a(f'ds_read_b64 {vr(cX, 2)}, v{cT} offset:{L_FLAG}')
        a('s_waitcnt lgkmcnt(0)')
        a(f'v_readfirstlane_b32 {sTmp}, v{cX}')
        a(f'v_readfirstlane_b32 {sTag}, v{cGA}')
        a(f's_cmp_eq_u32 {sTmp}, 1')
        self.spin_back(again, 's_cbranch_scc1', 1)
        a(f'ds_read_b128 {vr(QF, 4)}, v{vA2} offset:{L_QF}')
        self.set_tag_bytes()
        a(f'v_lshrrev_b32 v{cT}, 4, v{vL}')
        a(f'v_and_b32 v{cX}, 15, v{vL}')
        a(f's_lshl_b32 {sTmp}, {sWave}, 3')
        a(f'v_add_u32 v{cGA}, {sTmp}, v{cT}')
        a(f'v_lshlrev_b32 v{vK}, 13, v{cGA}')
        a(f'v_lshl_add_u32 v{vK}, v{cX}, 4, v{vK}')
        a(f'v_mul_u32_u24 v{vA1}, {8 * 3584}, v{cGA}')
        a(f'v_lshl_add_u32 v{vA1}, v{cX}, 3, v{vA1}')
        a(f's_lshl_b32 {sTmp}, {sWave}, 7')
        a(f'v_lshlrev_b32 v{vA2}, 13, v{cT}')
        a(f'v_lshl_add_u32 v{vA2}, v{cX}, 3, v{vA2}')
        a(f'v_add_u32 v{vA2}, {sTmp}, v{vA2}')
        a('s_waitcnt lgkmcnt(0)')
        self.stamp(6)

        wl = []
        for u, stg in ((0, 0), (1, 16)):
            for i in range(8):
                wl.append(lambda u=u, stg=stg, i=i: self.ld(q(stg + i), 4, vK, sWO, (32 * u + i) * 1024, self.wt, ('WO', u)))
        for t in range(2):
            for i in range(8):
                wl.append(lambda t=t, i=i: self.ld(q(24) + 16 * t + 2 * i, 2, vA1, sW1, (32 * t + i) * 3584, self.wt, 'W1'))
        for t in range(2):
            for i in range(8):
                wl.append(lambda t=t, i=i: self.ld(q(32) + 16 * t + 2 * i, 2, vA2, sW2, (32 * t + i) * 1024, self.wt, 'W2'))
        wi = [0]

        def wnext(n, limit):
            while n > 0 and wi[0] < min(limit, len(wl)):
                wl[wi[0]]()
                wi[0] += 1
                n -= 1

        def perm_x4(stg, fin):
            for e in range(8):
                for j in range(4):
                    sel = sPhi if e & 1 else sPlo
                    a(f'v_perm_b32 v{q(fin + e) + j}, v{q(stg + 2 * j + 1) + (e >> 1)}, v{q(stg + 2 * j) + (e >> 1)}, {sel}')

        def perm_x2(stg, fin):
            for t in range(2):
                for e in range(4):
                    for j in range(4):
                        sel = sPhi if e & 1 else sPlo
                        s0 = q(stg) + 16 * t + 4 * j + (e >> 1)
                        a(f'v_perm_b32 v{q(fin + 4 * t + e) + j}, v{s0 + 2}, v{s0}, {sel}')

        nv = [NQV]

        def vstep():
            j = nv[0]
            if j > 31:
                return
            if j - W >= 0:
                a.wait_vm(('V', j - W))
            vload(j)
            nv[0] += 1


        def s_mfma(n):
            a.wait_vm(('K', 4 * n + 3))
            for i in range(4 * n, 4 * n + 4):
                a(f'v_mfma_f32_16x16x32_bf16 {vq(i)}, {vq(i)}, {vr(QF, 4)}, 0')

        def s_valu(n):
            g = [q(i) for i in range(4 * n, 4 * n + 4)]
            for r in g:
                a(f'v_mov_b32_dpp v{r}, v{r} quad_perm:[0,0,0,0] {DPP}')
            for k in (1, 2, 3):
                for r in g:
                    a(f'v_add_f32_dpp v{r}, v{r + k}, v{r} quad_perm:[{k},{k},{k},{k}] {DPP}')
            if n == 0:
                a(f'v_max_f32 v{vM}, v{g[0]}, v{g[1]}')
            else:
                a(f'v_max3_f32 v{vM}, v{vM}, v{g[0]}, v{g[1]}')
            a(f'v_max3_f32 v{vM}, v{vM}, v{g[2]}, v{g[3]}')
            for r in g:
                self.bf(r, r)
            for r in g:
                a(f'v_mul_f32 v{r}, {SCALE}, v{r}')
            a(f'v_cvt_pk_bf16_f32 v{SP + 2 * n}, v{g[0]}, v{g[1]}')
            a(f'v_cvt_pk_bf16_f32 v{SP + 2 * n + 1}, v{g[2]}, v{g[3]}')

        s_mfma(0)
        for n in range(8):
            if n + 1 < 8:
                s_mfma(n + 1)
            s_valu(n)
            if n in (1, 3, 5, 7):
                vstep()
                if n >= 3:
                    wnext(self.wper, 8)
        self.cross_rows(vM, cT, 'v_max_f32')
        self.bf(vM, vM)
        a(f'v_mul_f32 v{vM}, {SCALE}, v{vM}')
        self.bf(vM, vM)
        a(f'v_mul_f32 v{cT}, 0xbfb8aa3b, v{vM}')
        a(f'v_mov_b32 v{vLs}, 0')
        tmp = q(8)
        for n in range(4):
            for k in range(4):
                a(f'v_lshlrev_b32 v{tmp + 2 * k}, 16, v{SP + 4 * n + k}')
                a(f'v_and_b32 v{tmp + 2 * k + 1}, 0xffff0000, v{SP + 4 * n + k}')
            for k in range(8):
                a(f'v_fma_f32 v{tmp + k}, v{tmp + k}, {sL2E}, v{cT}')
            for k in range(8):
                a(f'v_exp_f32 v{tmp + k}, v{tmp + k}')
            for k in range(4):
                a(f'v_cvt_pk_bf16_f32 v{SP + 4 * n + k}, v{tmp + 2 * k}, v{tmp + 2 * k + 1}')
            for k in range(0, 8, 2):
                a(f'v_add_f32 v{tmp + k}, v{tmp + k}, v{tmp + k + 1}')
            a(f'v_add_f32 v{tmp}, v{tmp}, v{tmp + 2}')
            a(f'v_add_f32 v{tmp + 4}, v{tmp + 4}, v{tmp + 6}')
            a(f'v_add_f32 v{tmp}, v{tmp}, v{tmp + 4}')
            a(f'v_add_f32 v{vLs}, v{vLs}, v{tmp}')
            if n == 1:
                vstep()
                wnext(self.wper, 16)
        self.cross_rows(vLs, cT)
        a(f'v_bfe_u32 v{cT}, v{vL}, 2, 2')
        a(f'v_lshlrev_b32 v{cT}, 5, v{cT}')
        a(f's_lshl_b32 {sTmp}, {sWave}, 2')
        a(f'v_add_u32 v{cT}, {sTmp}, v{cT}')
        a(f'v_mov_b32 v{cX}, 0')
        a(f'v_mov_b32 v{cGA}, 1')
        a('s_mov_b64 exec, 0x1111')
        a(f'ds_write_b32 v{cT}, v{vM} offset:{L_SM}')
        a(f'ds_write_b32 v{cT}, v{vLs} offset:{L_SL}')
        a('s_mov_b64 exec, 1')
        a(f'ds_add_u32 v{cX}, v{cGA} offset:{L_CNT}')
        a('s_mov_b64 exec, -1')
        self.stamp(7)

        npv = [0]

        def pv(j):
            ar = QF + 2 * (j & 1)
            sp = SP + (j >> 1)
            a(f'v_perm_b32 v{ar}, v{sp}, v{sp}, v{SEL + 2 * (j & 1)}')
            a(f'v_perm_b32 v{ar + 1}, v{sp}, v{sp}, v{SEL + 2 * (j & 1) + 1}')
            a.wait_vm(('V', j))
            c0 = '0' if j == 0 else vr(OA, 4)
            c1 = '0' if j == 0 else vr(OA + 4, 4)
            a(f'v_mfma_f32_16x16x16_bf16 {vr(OA, 4)}, {vr(ar, 2)}, {vr(vdst(j), 2)}, {c0}')
            a(f'v_mfma_f32_16x16x16_bf16 {vr(OA + 4, 4)}, {vr(ar, 2)}, {vr(vdst(j) + 2, 2)}, {c1}')

        def pv_upto(j):
            while npv[0] <= j:
                pv(npv[0])
                npv[0] += 1

        def landed(tag):
            return not any(t == tag for t, _ in a.st.vm)

        done_perm = set()
        misc_done = set()

        def wg_stats():
            a.comment('workgroup max / sum, own rescale factor, publish')
            again = a.newlabel('cnt')
            self.spin_begin()
            a(f'v_mov_b32 v{cT}, 0')
            a.label(again)
            a(f'ds_read_b32 v{cX}, v{cT} offset:{L_CNT}')
            a('s_waitcnt lgkmcnt(0)')
            a(f'v_readfirstlane_b32 {sTmp}, v{cX}')
            a(f's_cmp_eq_u32 {sTmp}, 8')
            self.spin_back(again, 's_cbranch_scc1')
            t = q(48)
            a(f'v_lshrrev_b32 v{cT}, 4, v{vL}')
            a(f'v_lshlrev_b32 v{cT}, 5, v{cT}')
            a(f's_lshl_b32 {sTmp}, {sWave}, 2')
            a(f'v_add_u32 v{cX}, {sTmp}, v{cT}')
            a(f'ds_read_b128 {vr(t, 4)}, v{cT} offset:{L_SM}')
            a(f'ds_read_b128 {vr(t + 4, 4)}, v{cT} offset:{L_SM + 16}')
            a(f'ds_read_b128 {vr(t + 8, 4)}, v{cT} offset:{L_SL}')
            a(f'ds_read_b128 {vr(t + 12, 4)}, v{cT} offset:{L_SL + 16}')
            a(f'ds_read_b32 v{cFW}, v{cX} offset:{L_SM}')
            a('s_waitcnt lgkmcnt(0)')
            a(f'v_max3_f32 v{vM}, v{t}, v{t + 1}, v{t + 2}')
            a(f'v_max3_f32 v{vM}, v{vM}, v{t + 3}, v{t + 4}')
            a(f'v_max3_f32 v{vM}, v{vM}, v{t + 5}, v{t + 6}')
            a(f'v_max_f32 v{vM}, v{vM}, v{t + 7}')
            for k in range(8):
                a(f'v_sub_f32 v{t + k}, v{t + k}, v{vM}')
            a(f'v_sub_f32 v{cFW}, v{cFW}, v{vM}')
            for k in range(8):
                a(f'v_mul_f32 v{t + k}, {sL2E}, v{t + k}')
            a(f'v_mul_f32 v{cFW}, {sL2E}, v{cFW}')
            for k in range(8):
                a(f'v_exp_f32 v{t + k}, v{t + k}')
            a(f'v_exp_f32 v{cFW}, v{cFW}')
            a(f'v_mul_f32 v{vLs}, v{t}, v{t + 8}')
            for k in range(1, 8):
                a(f'v_fmac_f32 v{vLs}, v{t + k}, v{t + 8 + k}')
            a(f'v_or_b32 v{t}, {sT[0]}, v{vM}')
            a(f'v_and_or_b32 v{t + 1}, v{vLs}, v{vMask}, {sT[1]}')
            a(f'v_mov_b32 v{t + 2}, {sT[2]}')
            a(f'v_mov_b32 v{t + 3}, {sT[3]}')
            a(f's_lshl_b32 {sTmp}, {sB}, 5')
            a(f's_add_u32 {sTmp}, {sTmp}, {sJ}')
            a(f's_lshl_b32 {sTmp}, {sTmp}, 6')
            a(f's_add_u32 {sTmp}, {sTmp}, {WS_ST}')
            a(f's_xor_b32 {sTmp2}, {sWave}, 1')
            a(f'v_and_b32 v{cX}, 15, v{vL}')
            a(f'v_add_u32 v{cX}, {sTmp2}, v{cX}')
            a(f'v_lshlrev_b32 v{cX}, 22, v{cX}')
            a(f'v_lshrrev_b32 v{cT}, 1, v{cT}')
            a(f'v_add3_u32 v{cX}, v{cX}, v{cT}, {sTmp}')
            a(f'buffer_store_dwordx4 {vr(t, 4)}, v{cX}, {sWS}, 0 offen sc1')

        def m_loads():
            self.ld(q(32), 4, vA1, sWS, 0, 'sc1', 'M')
            self.ld(q(33), 4, vA1, sWS, 4096, 'sc1', 'M')
            self.ld(q(34), 4, vA1, sWS, 2048, 'sc1', 'M')
            self.ld(q(35), 4, vA2, sWS, 6144, 'sc1', 'M')

        def m_addr():
            a(f's_lshl_b32 {sTmp}, {sB}, 13')
            a(f's_add_u32 {sTmp}, {sTmp}, {WS_M}')
            a(f's_lshl_b32 {sTmp2}, {sWave}, 8')
            a(f's_add_u32 {sTmp2}, {sTmp2}, {sTmp}')
            a(f'v_and_b32 v{vA1}, 15, v{vL}')
            a(f'v_lshlrev_b32 v{vA1}, 4, v{vA1}')
            a(f'v_add_u32 v{vA1}, {sTmp2}, v{vA1}')
            a(f's_lshl_b32 {sTmp2}, {sJ}, 6')
            a(f's_add_u32 {sTmp2}, {sTmp2}, {sTmp}')
            a(f'v_and_b32 v{vA2}, 3, v{vL}')
            a(f'v_lshlrev_b32 v{vA2}, 4, v{vA2}')
            a(f'v_add_u32 v{vA2}, {sTmp2}, v{vA2}')
            a(f's_lshl_b32 {sTmp}, {sB}, 10')
            a(f's_lshl_b32 {sTmp2}, {sWave}, 7')
            a(f's_add_u32 {sTmp}, {sTmp}, {sTmp2}')
            a(f'v_and_b32 v{cX}, 15, v{vL}')
            a(f'v_lshlrev_b32 v{cX}, 3, v{cX}')
            a(f'v_lshrrev_b32 v{cT}, 4, v{vL}')
            a(f'v_lshl_add_u32 v{cX}, v{cT}, 1, v{cX}')
            a(f'v_add_u32 v{cT}, {sTmp}, v{cX}')
            a(f'buffer_load_ushort v{cX}, v{cT}, {sX}, 0 offen', tag='M')

        def m_finish():
            a.wait_vm('M')
            self.poll(m_loads, [q(32), q(33), q(34), q(35)], cT, first_done=True)
            for rho in range(4):
                lo, hi = (0xffff << (16 * rho)) & 0xffffffff, (0xffff << (16 * rho)) >> 32
                a(f's_mov_b32 exec_lo, {lo:#x}')
                a(f's_mov_b32 exec_hi, {hi:#x}')
                a(f'v_mov_b32 v{cGA}, v{q(32) + rho}')
                a(f'v_add_f32 v{cCB}, 1.0, v{q(33) + rho}')
                a(f'v_mov_b32 v{cSB}, v{q(34) + rho}')
                a(f'v_mov_b32 v{cGB}, v{q(35) + rho}')
            a('s_mov_b64 exec, -1')
            self.bf(cCB, cCB)
            a(f'v_lshlrev_b32 v{cX}, 16, v{cX}')

        def st_load():
            self.ld(SP, 4, vK, sWS, 0, 'sc1', 'ST')

        def st_addr():
            a(f's_lshl_b32 {sTmp}, {sB}, 3')
            a(f's_add_u32 {sTmp}, {sTmp}, {sKvh}')
            a(f's_lshl_b32 {sTmp}, {sTmp}, 8')
            a(f's_lshr_b32 {sTmp2}, {sWave}, 1')
            a(f's_lshl_b32 {sTmp2}, {sTmp2}, 4')
            a(f's_add_u32 {sTmp}, {sTmp}, {sTmp2}')
            a(f's_add_u32 {sTmp}, {sTmp}, {WS_ST}')
            a(f'v_lshrrev_b32 v{vK}, 4, v{vL}')
            a(f'v_lshlrev_b32 v{vK}, 6, v{vK}')
            a(f'v_add_u32 v{vK}, {sTmp}, v{vK}')

        while nv[0] <= 31:
            j = nv[0]
            if j >= 20:
                pv_upto(j - 12)
            vstep()
            limit = 48 if npv[0] >= 8 else 32
            wnext(self.wper, limit)
            pv_upto(j - W)
            if 'WO0' not in done_perm and wi[0] >= 8 and landed(('WO', 0)):
                perm_x4(0, 8); done_perm.add('WO0')
            elif 'WO1' not in done_perm and 'WO0' in done_perm and wi[0] >= 16 and landed(('WO', 1)):
                perm_x4(16, 0); done_perm.add('WO1')
            elif 'W1' not in done_perm and 'WO1' in done_perm and wi[0] >= 32 and landed('W1'):
                perm_x2(24, 16); done_perm.add('W1')
            elif 'W2' not in done_perm and 'W1' in done_perm and wi[0] >= 48 and landed('W2'):
                perm_x2(32, 24); done_perm.add('W2')
            if j == self.jstat:
                assert npv[0] >= 20
                wg_stats()
            if 'W2' in done_perm and 'm' not in misc_done:
                m_addr(); m_loads(); misc_done.add('m')
            if j == 30:
                assert wi[0] >= 16
                st_addr(); st_load()
        assert wi[0] == 48 and 'm' in misc_done, (wi[0], done_perm)
        m_finish()
        pv_upto(31)
        self.stamp(8)

        a(f's_mul_i32 {sTmp}, {sWave}, 2304')
        a(f'v_lshlrev_b32 v{cT}, 4, v{vL}')
        a(f'v_add_u32 v{cT}, {sTmp}, v{cT}')
        a(f's_lshl_b32 {sTmp}, {sB}, 3')
        a(f's_add_u32 {sTmp}, {sTmp}, {sKvh}')
        a(f's_lshl_b32 {sTmp}, {sTmp}, 13')
        a(f's_add_u32 {sTmp}, {sTmp}, {WS_O}')
        a(f's_lshl_b32 {sTmp2}, {sWave}, 8')
        a(f's_add_u32 {sTmp2}, {sTmp2}, {sTmp}')
        a(f'v_lshrrev_b32 v{vA1}, 4, v{vL}')
        a(f'v_lshlrev_b32 v{vA1}, 11, v{vA1}')
        a(f'v_and_b32 v{vA2}, 15, v{vL}')
        a(f'v_lshl_add_u32 v{vA1}, v{vA2}, 4, v{vA1}')
        a(f'v_add_u32 v{vA1}, {sTmp2}, v{vA1}')
        for r in range(8):
            a(f'v_mul_f32 v{OA + r}, v{OA + r}, v{cFW}')
        a(f'ds_write_b128 v{cT}, {vr(OA, 4)} offset:{L_OP}')
        a(f'ds_write_b128 v{cT}, {vr(OA + 4, 4)} offset:{L_OP + 1152}')
        a(f's_lshl_b32 {sTmp2}, {sWave}, 6')
        a(f'v_add_u32 v{vA2}, {sTmp2}, v{vL}')
        a(f'v_and_b32 v{vV}, 1, v{vA2}')
        a(f'v_mul_u32_u24 v{vV}, 1152, v{vV}')
        a(f'v_lshrrev_b32 v{vM}, 1, v{vA2}')
        a(f'v_lshl_add_u32 v{vV}, v{vM}, 4, v{vV}')
        a(f's_lshl_b32 {sTmp2}, {sSp}, 11')
        a(f's_add_u32 {sTmp}, {sTmp}, {sTmp2}')
        a(f'v_lshlrev_b32 v{vA2}, 4, v{vA2}')
        a(f'v_add_u32 v{vA2}, {sTmp}, v{vA2}')
        a('s_waitcnt lgkmcnt(0)')
        a('s_barrier')
        a(f's_cmp_ge_u32 {sWave}, 2')
        a('s_cbranch_scc1 L_h1')
        st = a.snapshot()
        for w in range(8):
            a(f'ds_read_b128 {vq(40 + w)}, v{vV} offset:{L_OP + 2304 * w}', tag=('op', w))
        for w in (1, 3, 5, 7):
            a.wait_lgkm(('op', w))
            a(f'v_pk_add_f32 {vr(q(39 + w), 2)}, {vr(q(39 + w), 2)}, {vr(q(40 + w), 2)}')
            a(f'v_pk_add_f32 {vr(q(39 + w) + 2, 2)}, {vr(q(39 + w) + 2, 2)}, {vr(q(40 + w) + 2, 2)}')
            if w in (3, 7):
                a(f'v_pk_add_f32 {vr(q(37 + w), 2)}, {vr(q(37 + w), 2)}, {vr(q(39 + w), 2)}')
                a(f'v_pk_add_f32 {vr(q(37 + w) + 2, 2)}, {vr(q(37 + w) + 2, 2)}, {vr(q(39 + w) + 2, 2)}')
        a(f'v_pk_add_f32 {vr(q(40), 2)}, {vr(q(40), 2)}, {vr(q(44), 2)}')
        a(f'v_pk_add_f32 {vr(q(40) + 2, 2)}, {vr(q(40) + 2, 2)}, {vr(q(44) + 2, 2)}')
        for r in range(4):
            a(f'v_and_or_b32 v{q(40) + r}, v{q(40) + r}, v{vMask}, {sT[r]}')
        a(f'buffer_store_dwordx4 {vq(40)}, v{vA2}, {sWS}, 0 offen sc1')
        hist = a.st.hist
        a.restore(st)
        a.st.hist = hist
        a.label('L_h1')
        self.ld(q(37), 4, vA1, sWS, 0, 'sc1', 'o')
        a.wait_vm('ST')
        self.poll(st_load, [SP], cT, first_done=True)
        t = SP
        a(f'v_mov_b32 v{t + 2}, v{t}')
        self.cross_rows(t + 2, cT, 'v_max_f32')
        a(f'v_sub_f32 v{t}, v{t}, v{t + 2}')
        a(f'v_mul_f32 v{t}, {sL2E}, v{t}')
        a(f'v_exp_f32 v{t}, v{t}')
        a(f'v_mul_f32 v{t + 1}, v{t + 1}, v{t}')
        self.cross_rows(t + 1, cT)
        a(f'v_rcp_f32 v{t + 1}, v{t + 1}')
        a(f'v_mul_f32 v{cF}, v{t}, v{t + 1}')
        a(f's_lshl_b32 {sTmp}, {sWave}, 7')
        a(f's_add_u32 {sTmp}, {sTmp}, {L_PRIV}')
        a(f'v_lshrrev_b32 v{cT}, 4, v{vL}')
        a(f'v_and_b32 v{vM}, 15, v{vL}')
        a(f'v_lshlrev_b32 v{vM}, 3, v{vM}')
        a(f'v_lshl_add_u32 v{vM}, v{cT}, 1, v{vM}')
        a(f'v_add_u32 v{vM}, {sTmp}, v{vM}')
        a(f'v_lshlrev_b32 v{vLs}, 4, v{cT}')
        a(f'v_add_u32 v{vLs}, {sTmp}, v{vLs}')
        a.wait_vm('o')
        self.poll(lambda: self.ld(q(37), 4, vA1, sWS, 0, 'sc1', 'o'), [q(37)], cT, first_done=True)
        self.stamp(9)
        t = q(37)
        for r in range(4):
            a(f'v_mul_f32 v{t + r}, v{t + r}, v{cF}')
        self.tr_reduce(t)
        a(f'v_cvt_pk_bf16_f32 v{t}, v{t}, v{t}')
        a(f'ds_write_b16 v{vM}, v{t}')
        a(f'ds_read_b128 {vq(38)}, v{vLs}', tag='a0')
        a(f'ds_read_b128 {vq(39)}, v{vLs} offset:64', tag='a1')
        a(f's_lshl_b32 {sTmp}, {sWave}, 9')
        a(f's_add_u32 {sTmp}, {sTmp}, {L_YP}')
        a(f'v_and_b32 v{vA2}, 15, v{vL}')
        a(f'v_lshlrev_b32 v{vV}, 5, v{vA2}')
        a(f'v_add_u32 v{vV}, {sTmp}, v{vV}')
        a(f's_lshl_b32 {sTmp}, {sB}, 14')
        a(f's_lshl_b32 {sTmp2}, {sWave}, 8')
        a(f's_add_u32 {sTmp2}, {sTmp2}, {sTmp}')
        a(f's_add_u32 {sTmp2}, {sTmp2}, {WS_Y}')
        a(f'v_lshrrev_b32 v{vA1}, 4, v{vL}')
        a(f'v_lshlrev_b32 v{vA1}, 11, v{vA1}')
        a(f'v_lshl_add_u32 v{vA1}, v{vA2}, 4, v{vA1}')
        a(f'v_add_u32 v{vA1}, {sTmp2}, v{vA1}')
        a.wait_lgkm('a0')
        for e in range(8):
            a(f'v_mfma_f32_16x16x32_bf16 {vq(40 + e)}, {vq(38)}, {vq(8 + e)}, 0')
        a.wait_lgkm('a1')
        for e in range(8):
            a(f'v_mfma_f32_16x16x32_bf16 {vq(40 + e)}, {vq(39)}, {vq(0 + e)}, {vq(40 + e)}')
        a('s_mov_b64 exec, 0xffff')
        for e in range(0, 8, 2):
            a(f'ds_write2_b32 v{vV}, v{q(40 + e)}, v{q(41 + e)} offset0:{e} offset1:{e + 1}')
        a('s_mov_b64 exec, -1')
        a(f's_lshl_b32 {sTmp2}, {sKvh}, 11')
        a(f's_add_u32 {sTmp}, {sTmp}, {sTmp2}')
        a(f's_lshl_b32 {sTmp2}, {sSp}, 9')
        a(f's_add_u32 {sTmp}, {sTmp}, {sTmp2}')
        a(f's_add_u32 {sTmp}, {sTmp}, {WS_Y}')
        a(f'v_lshlrev_b32 v{vV}, 4, v{vL}')
        a(f'v_add_u32 v{vA2}, {sTmp}, v{vV}')
        a('s_waitcnt lgkmcnt(0)')
        a('s_barrier')
        a(f's_cmp_lg_u32 {sWave}, 0')
        a('s_cbranch_scc1 L_h2')
        st = a.snapshot()
        a('s_mov_b64 exec, 0xffffffff')
        for w in range(8):
            a(f'ds_read_b128 {vq(40 + w)}, v{vV} offset:{L_YP + 512 * w}', tag=('yp', w))
        for w in (1, 3, 5, 7):
            a.wait_lgkm(('yp', w))
            a(f'v_pk_add_f32 {vr(q(39 + w), 2)}, {vr(q(39 + w), 2)}, {vr(q(40 + w), 2)}')
            a(f'v_pk_add_f32 {vr(q(39 + w) + 2, 2)}, {vr(q(39 + w) + 2, 2)}, {vr(q(40 + w) + 2, 2)}')
            if w in (3, 7):
                a(f'v_pk_add_f32 {vr(q(37 + w), 2)}, {vr(q(37 + w), 2)}, {vr(q(39 + w), 2)}')
                a(f'v_pk_add_f32 {vr(q(37 + w) + 2, 2)}, {vr(q(37 + w) + 2, 2)}, {vr(q(39 + w) + 2, 2)}')
        a(f'v_pk_add_f32 {vr(q(40), 2)}, {vr(q(40), 2)}, {vr(q(44), 2)}')
        a(f'v_pk_add_f32 {vr(q(40) + 2, 2)}, {vr(q(40) + 2, 2)}, {vr(q(44) + 2, 2)}')
        for r in range(4):
            a(f'v_and_or_b32 v{q(40) + r}, v{q(40) + r}, v{vMask}, {sT[r]}')
        a(f'buffer_store_dwordx4 {vq(40)}, v{vA2}, {sWS}, 0 offen sc1')
        a('s_mov_b64 exec, -1')
        hist = a.st.hist
        a.restore(st)
        a.st.hist = hist
        a.label('L_h2')
        self.poll(lambda: [self.ld(q(36 + k), 4, vA1, sWS, 8192 * k, 'sc1', 'y') for k in range(2)],
                  [q(36), q(37)], cT)
        self.stamp(10)
        t = q(36)
        a(f'v_pk_add_f32 {vr(t, 2)}, {vr(t, 2)}, {vr(t + 4, 2)}')
        a(f'v_pk_add_f32 {vr(t + 2, 2)}, {vr(t + 2, 2)}, {vr(t + 6, 2)}')
        self.tr_reduce(t)
        self.bf(t, t)
        a(f'v_mul_f32 v{t}, v{t}, v{cGA}')
        self.bf(t, t)
        a(f'v_add_f32 v{t}, v{t}, v{cX}')
        self.bf(cX, t)
        a(f'v_mul_f32 v{t + 1}, v{cX}, v{cX}')
        a(f'v_mov_b32 v{t}, v{cX}')
        a(f'v_subrev_u32 v{t + 2}, {L_PRIV}, v{vM}')
        a(f'v_lshlrev_b32 v{t + 2}, 1, v{t + 2}')
        a(f'v_permlane32_swap_b32 v{t}, v{t + 1}')
        a(f'ds_write_b32 v{t + 2}, v{cX} offset:{L_X2}')
        a(f'v_add_f32 v{t}, v{t}, v{t + 1}')
        a(f'v_mov_b32 v{t + 1}, v{t}')
        a(f'v_permlane16_swap_b32 v{t + 1}, v{t}')
        a(f'v_add_f32 v{t}, v{t}, v{t + 1}')
        self.row_sum(t)
        a(f's_lshl_b32 {sTmp}, {sWave}, 2')
        a(f'v_and_b32 v{t + 1}, 32, v{vL}')
        a(f'v_add_u32 v{t + 1}, {sTmp}, v{t + 1}')
        a('s_mov_b32 exec_lo, 1')
        a('s_mov_b32 exec_hi, 1')
        a(f'ds_write_b32 v{t + 1}, v{t} offset:{L_LNS}')
        a('s_mov_b64 exec, -1')
        a(f'v_mov_b32 v{t + 1}, 0')
        a('s_waitcnt lgkmcnt(0)')
        a('s_barrier')
        a(f's_cmp_ge_u32 {sJ}, 28')
        a('s_cbranch_scc1 L_final')
        st_fin = a.snapshot()
        for k in range(4):
            a(f'ds_read_b128 {vq(40 + k)}, v{t + 1} offset:{L_LNS + 16 * k}')
        a(f's_lshl_b32 {sTmp}, {sWave}, 8')
        a(f's_add_u32 {sTmp}, {sTmp}, {L_UP}')
        a(f'v_and_b32 v{vA2}, 15, v{vL}')
        a(f'v_lshlrev_b32 v{vA2}, 4, v{vA2}')
        a(f'v_add_u32 v{vV}, {sTmp}, v{vA2}')
        a(f's_mul_i32 {sTmp2}, {sB}, 28')
        a(f's_add_u32 {sTmp2}, {sTmp2}, {sJ}')
        a(f's_lshl_b32 {sTmp2}, {sTmp2}, 11')
        a(f's_add_u32 {sTmp2}, {sTmp2}, {sTmp}')
        a(f's_add_u32 {sTmp2}, {sTmp2}, {WS_Z - L_UP}')
        a(f'v_add_u32 v{vA1}, {sTmp2}, v{vA2}')
        a(f'v_lshrrev_b32 v{cT}, 4, v{vL}')
        a(f'v_lshl_add_u32 v{vA2}, v{cT}, 9, v{vA2}')
        a('s_waitcnt lgkmcnt(0)')
        s = q(40)
        a(f'v_pk_add_f32 {vr(s, 2)}, {vr(s, 2)}, {vr(s + 2, 2)}')
        a(f'v_pk_add_f32 {vr(s + 4, 2)}, {vr(s + 4, 2)}, {vr(s + 6, 2)}')
        a(f'v_pk_add_f32 {vr(s + 8, 2)}, {vr(s + 8, 2)}, {vr(s + 10, 2)}')
        a(f'v_pk_add_f32 {vr(s + 12, 2)}, {vr(s + 12, 2)}, {vr(s + 14, 2)}')
        a(f'v_pk_add_f32 {vr(s, 2)}, {vr(s, 2)}, {vr(s + 4, 2)}')
        a(f'v_pk_add_f32 {vr(s + 8, 2)}, {vr(s + 8, 2)}, {vr(s + 12, 2)}')
        a(f'v_add_f32 v{s}, v{s}, v{s + 1}')
        a(f'v_add_f32 v{s + 8}, v{s + 8}, v{s + 9}')
        a(f'v_mul_f32 v{s}, 0x3b000000, v{s}')
        a(f'v_mul_f32 v{s + 8}, 0x3b000000, v{s + 8}')
        a(f'v_fma_f32 v{s + 8}, -v{s}, v{s}, v{s + 8}')
        self.bf(s, s)
        a(f'v_max_f32 v{s + 8}, 0, v{s + 8}')
        a(f'v_sub_f32 v{s}, v{cX}, v{s}')
        self.bf(s + 8, s + 8)
        self.bf(s, s)
        a(f'v_add_f32 v{s + 8}, {EPS}, v{s + 8}')
        self.bf(s + 8, s + 8)
        a(f'v_sqrt_f32 v{s + 8}, v{s + 8}')
        self.bf(s + 8, s + 8)
        a(f'v_rcp_f32 v{s + 8}, v{s + 8}')
        a(f'v_mul_f32 v{s}, v{s}, v{s + 8}')
        self.bf(s, s)
        a(f'v_mul_f32 v{s}, v{s}, v{cCB}')
        self.bf(s, s)
        a(f'v_add_f32 v{s}, v{s}, v{cSB}')
        a(f'v_cvt_pk_bf16_f32 v{s}, v{s}, v{s}')
        a(f'ds_write_b16 v{vM}, v{s}')
        a(f'ds_read_b128 {vq(38)}, v{vLs}', tag='a0')
        a(f'ds_read_b128 {vq(39)}, v{vLs} offset:64', tag='a1')
        a.wait_lgkm('a0')
        for e in range(4):
            a(f'v_mfma_f32_16x16x32_bf16 {vq(40 + e)}, {vq(38)}, {vq(16 + e)}, 0')
        a.wait_lgkm('a1')
        for e in range(4):
            a(f'v_mfma_f32_16x16x32_bf16 {vq(40 + e)}, {vq(39)}, {vq(20 + e)}, {vq(40 + e)}')
        a('s_mov_b64 exec, 0xffff')
        a(f'ds_write2_b32 v{vV}, v{q(40)}, v{q(41)} offset0:0 offset1:1')
        a(f'ds_write2_b32 v{vV}, v{q(42)}, v{q(43)} offset0:2 offset1:3')
        a('s_mov_b64 exec, -1')
        a('s_waitcnt lgkmcnt(0)')
        a('s_barrier')
        a(f'ds_read_b128 {vq(36)}, v{vA2} offset:{L_UP}')
        a(f'ds_read_b128 {vq(37)}, v{vA2} offset:{L_UP + 256}')
        a('s_waitcnt lgkmcnt(0)')
        t = q(36)
        a(f'v_pk_add_f32 {vr(t, 2)}, {vr(t, 2)}, {vr(t + 4, 2)}')
        a(f'v_pk_add_f32 {vr(t + 2, 2)}, {vr(t + 2, 2)}, {vr(t + 6, 2)}')
        self.tr_reduce(t)
        a(f'v_max_f32 v{t}, 0, v{t}')
        a(f'v_cvt_pk_bf16_f32 v{t}, v{t}, v{t}')
        a(f'ds_write_b16 v{vM}, v{t}')
        a(f'ds_read_b128 {vq(38)}, v{vLs}', tag='a0')
        a(f'ds_read_b128 {vq(39)}, v{vLs} offset:64', tag='a1')
        a.wait_lgkm('a0')
        for e in range(4):
            a(f'v_mfma_f32_16x16x32_bf16 {vq(40 + e)}, {vq(38)}, {vq(24 + e)}, 0')
        a.wait_lgkm('a1')
        for e in range(4):
            a(f'v_mfma_f32_16x16x32_bf16 {vq(40 + e)}, {vq(39)}, {vq(28 + e)}, {vq(40 + e)}')
        for e in range(4):
            a(f'v_and_or_b32 v{q(36) + e}, v{q(40 + e)}, v{vMask}, {sT[e]}')
        a('s_mov_b64 exec, 0xffff')
        a(f'buffer_store_dwordx4 {vq(36)}, v{vA1}, {sWS}, 0 offen sc1')
        a('s_mov_b64 exec, -1')
        a.label('L_final')
        a(f's_cmp_lg_u32 {sWave}, 0')
        a('s_cbranch_scc1 L_out')
        a(f's_mul_i32 {sTmp}, {sB}, {28 * 2048}')
        a(f's_lshl_b32 {sTmp2}, {sJ}, 6')
        a(f's_add_u32 {sTmp}, {sTmp}, {sTmp2}')
        a(f's_add_u32 {sTmp}, {sTmp}, {WS_Z}')
        a(f'v_and_b32 v{cT}, 3, v{vL}')
        a(f'v_lshrrev_b32 v{vA1}, 2, v{vL}')
        a(f'v_lshlrev_b32 v{vA1}, 11, v{vA1}')
        a(f'v_lshl_add_u32 v{vA1}, v{cT}, 4, v{vA1}')
        a(f'v_add_u32 v{vA1}, {sTmp}, v{vA1}')
        a(f'v_cmp_gt_u32 vcc, 48, v{vL}')
        a(f'v_mov_b32 v{vA2}, 0x8000')
        a(f'v_cndmask_b32 v{vA2}, 0, v{vA2}, vcc')
        a(f'v_cndmask_b32 v{cF}, 0, 1.0, vcc')
        a(f'v_add_u32 v{vA2}, v{vA2}, v{vA1}')
        a(f'v_lshrrev_b32 v{vV}, 4, v{vL}')
        a(f'v_lshl_add_u32 v{vV}, v{cT}, 2, v{vV}')
        a(f's_lshl_b32 {sTmp2}, {sJ}, 4')
        a(f'v_add_u32 v{vV}, {sTmp2}, v{vV}')
        a(f'v_lshlrev_b32 v{vK}, 2, v{vV}')
        a(f'ds_read_b32 v{cX}, v{vK} offset:{L_X2}')
        a(f's_lshl_b32 {sTmp2}, {sB}, 10')
        a(f'v_lshlrev_b32 v{vV}, 1, v{vV}')
        a(f'v_add_u32 v{vV}, {sTmp2}, v{vV}')
        self.poll(lambda: [self.ld(q(44), 4, vA1, sWS, 0, 'sc1', 'z'), self.ld(q(45), 4, vA2, sWS, 0, 'sc1', 'z')],
                  [q(44), q(45)], cT)
        t = q(44)
        for r in range(4):
            a(f'v_fmac_f32 v{t + r}, v{t + 4 + r}, v{cF}')
        self.tr_reduce(t)
        a(f'v_add_f32_dpp v{t}, v{t}, v{t} row_ror:4 {DPP}')
        a(f'v_add_f32_dpp v{t}, v{t}, v{t} row_ror:8 {DPP}')
        self.bf(t, t)
        a(f'v_mul_f32 v{t}, v{t}, v{cGB}')
        self.bf(t, t)
        a('s_waitcnt lgkmcnt(0)')
        a(f'v_add_f32 v{t}, v{t}, v{cX}')
        a(f'v_cvt_pk_bf16_f32 v{t}, v{t}, v{t}')
        a('s_mov_b32 exec_lo, 0x000f000f')
        a('s_mov_b32 exec_hi, 0x000f000f')
        a(f'buffer_store_short v{t}, v{vV}, {sOUT}, 0 offen')
        a.label('L_out')
        self.stamp(11)
        self.stamps_out()
        a.label('L_end')
        a('s_endpgm')
        assert a.max_v <= 255 and a.max_s <= 101
        return kernel_file(HDR, [f'; @launch grid=(256,1,1) block=(512,1,1) lds={self.lds}'],
                           [(NAME + '_kernel', a.text(), 256, 102, 256)])


if __name__ == '__main__':
    import argparse
    ap = argparse.ArgumentParser()
    ap.add_argument('-o', default='cdna_kernels/' + NAME + '.s')
    ap.add_argument('--W', type=int, default=3)
    ap.add_argument('--WAUX', type=int, default=40)
    ap.add_argument('--NQV', type=int, default=8)
    ap.add_argument('--wper', type=int, default=3)
    ap.add_argument('--kv', default='nt')
    ap.add_argument('--wt', default='')
    ap.add_argument('--pw', default='')
    ap.add_argument('--lds', type=int, default=0)
    ap.add_argument('--ts', nargs='?', const='ws', default='')
    x = ap.parse_args()
    g = Gen(W=x.W, WAUX=x.WAUX, NQV=x.NQV, kv=x.kv, wt=x.wt, pw=x.pw, ts=x.ts, lds=x.lds or None, wper=x.wper)
    open(x.o, 'w').write(g.build())
    print('written', x.o, 'nops', g.a.nops_inserted, 'max v', g.a.max_v, 'max s', g.a.max_s)
```
